```python
import torch

def _softmax(x, axis=-1):
    return torch.softmax(x, dim=axis)
def _gelu(x):
    return torch.nn.functional.gelu(x, approximate="tanh")
def _silu(x):
    return torch.nn.functional.silu(x)
def _sigmoid(x):
    return torch.sigmoid(x)
def _layernorm(x, axis=-1, eps=1e-5):
    m = x.mean(dim=axis, keepdim=True)
    v = x.var(dim=axis, keepdim=True, unbiased=False)
    return (x - m) / torch.sqrt(v + eps)
def _scatter_add(tgt, idx, src, axis=0):
    return tgt.clone().index_add_(axis, idx, src)
def _segment_sum(src, seg, n):
    out = torch.zeros((n,) + src.shape[1:], dtype=src.dtype)
    return out.index_add_(0, seg, src)
def _pad(x, pw):
    flat = tuple(v for pair in reversed(pw) for v in pair)
    return torch.nn.functional.pad(x, flat)

kernel_name = 'standalone__gqa_block_cached__sampling'

def setup_inputs():

    _w = (lambda a: (lambda t: t.to(torch.bfloat16) if t.is_floating_point() else t)(torch.as_tensor(a)))
    B, Sq, D = 8, 1, 448
    Hq, Hkv, Sk, Dh = 16, 8, 8192, 256
    assert Hq % Hkv == 0, (Hq, Hkv)
    return {
        "x": _w((lambda *s: torch.randn(*s, dtype=torch.bfloat16) * 0.8)(B, Sq, D)),
        "k_cache": _w((lambda *s: torch.randn(*s, dtype=torch.bfloat16) * 0.8)(B, Hkv, Sk, Dh)),
        "v_cache": _w((lambda *s: torch.randn(*s, dtype=torch.bfloat16) * 0.05)(B, Hkv, Sk, Dh)),
        "wq": _w((lambda *s: torch.randn(*s, dtype=torch.bfloat16) * 0.8)(D, Hq * Dh) * (D ** -0.5)),
        "wo": _w((lambda *s: torch.randn(*s, dtype=torch.bfloat16) * 0.05)(Hq * Dh, D) * ((Hq * Dh) ** -0.5)),
    }

def reference(x, k_cache, v_cache, wq, wo):
    B, Sq, D = x.shape
    Hq, Dh = 16, 256
    Hkv = k_cache.shape[1]
    rep = Hq // Hkv
    q = (lambda x, *d: x.permute(*d))((x @ wq).reshape(B, Sq, Hq, Dh), 0, 2, 1, 3)
    k = (lambda x, n, axis: torch.repeat_interleave(x, n, dim=axis))(k_cache, rep, axis=1)
    v = (lambda x, n, axis: torch.repeat_interleave(x, n, dim=axis))(v_cache, rep, axis=1)
    scores = torch.einsum("bhqd,bhkd->bhqk", q, k) * (Dh ** -0.5)
    p = _softmax(scores, axis=-1)
    o = torch.einsum("bhqk,bhkd->bhqd", p, v)
    return (lambda x, *d: x.permute(*d))(o, 0, 2, 1, 3).reshape(B, Sq, Hq * Dh) @ wo
```

```python
import sys, json, struct, math

KNAME = "standalone__gqa_block_cached__sampling_kernel"

def f2u(x):
    return struct.unpack("<I", struct.pack("<f", x))[0]

def gen(name, R=4, C=1, NS=4, nB=10, tk=1, pre=1, gran=4, bar0=1, stamps=0, spin=1 << 20, hsleep=2, prio=0):
    nA = 16
    assert 2 * tk * pre >= C + 1 or (C == 1 and pre * tk >= 1)
    assert R + NS <= nA and R >= 3 and C < R
    assert nB >= C + 2 and nB <= 16
    NT = (16 - nB) * 32 // tk
    PIECE, UNIT = 1056, 8448
    RING = R * UNIT
    L_X = 4 * RING
    L_Q = L_X + 14336
    L_O = L_Q + 2048
    L_CNT = L_O + 256
    L_P = L_CNT + 64
    PREC = 2080
    LDS = L_P + 4 * PREC
    assert LDS <= 163840, LDS
    WS_Q, WS_CNT, WS_ML, WS_PO, WS_FIN, WS_DBG, WS_SIZE = 0, 0x10000, 0x20000, 0x40000, 0x140000, 0x300000, 0x400000
    C1 = math.log2(math.e) / 16.0
    NEGBIG = f2u(-3.0e38)

    out = []
    A = out.append
    lab = [0]
    def newl(p):
        lab[0] += 1
        return f"L_{p}_{lab[0]}"

    S = dict(
        SRD=8, WS=12, W2=16, DBG=20, XO=24,
        wave=28, grp=29, j=30, hkv=31, bp=32, bhA=33,
        off=34, rem=35, stride=36, half=37, rstart=38, rn=39, phase=40, seg=41,
        lslot=42, rbase=43, rend=44, cslot=45, skip=46, ldone=47, grant=48, done=49,
        tslot=50, inval=51, pend=52, startB=53, pool=54, cnt=55, n=56, u=57,
        t0=58, t1=59, t2=60, t3=61, c1=62, cseg=63,
        st0=80, st1=82, st2=84, st3=86, st4=88, st5=90, msk=92, spin=94, t4=95, t5=96,
    )
    s = lambda n: f"s{S[n]}"
    sq = lambda n: f"s[{S[n]}:{S[n]+3}]"
    sp = lambda n: f"s[{S[n]}:{S[n]+1}]"
    KA = dict(x=64, K=66, V=68, wq=70, wo=72, out=74, dbg=76, ws=78)

    V = dict(lane=1, dma=2, krd=3, vrd=4, sad=5, ta=6, tb=7, tick=8, zero=9, m=10, mc=11, l=12, smax=13,
             t0=14, t1=15, t2=16, t3=17, t4=18, t5=19, acc=20, p=24, s4=28, c=26, g=27,
             q=32, kf=64, o=96, x=160)
    v = lambda n, i=0: f"v{V[n]+i}"
    vr = lambda n, i, k: f"v[{V[n]+i}:{V[n]+i+k-1}]"
    NVGPR = 192

    if stamps: A(f"; stamps5=1")
    A(f"; @launch grid=(256,1,1) block=(320,1,1) lds={LDS}")
    A('.amdgcn_target "amdgcn-amd-amdhsa--gfx950"')
    A(".text")
    A(f".globl {KNAME}")
    A(".p2align 8")
    A(f".type {KNAME},@function")
    A(f"{KNAME}:")
    A("s_cmp_ge_u32 s2, 256")
    A("s_cbranch_scc1 L_end")
    if stamps: A(f"s_memrealtime {sp('st0')}")
    A("s_load_dwordx16 s[64:79], s[0:1], 0")
    A("v_lshrrev_b32 v2, 6, v0")
    A(f"v_and_b32 {v('lane')}, 63, v0")
    A("s_nop 0")
    A(f"v_readfirstlane_b32 {s('wave')}, v2")
    A(f"s_lshr_b32 {s('grp')}, s2, 3")
    A(f"s_and_b32 {s('j')}, s2, 7")
    A(f"s_lshr_b32 {s('hkv')}, {s('grp')}, 2")
    A(f"s_and_b32 {s('bp')}, {s('grp')}, 3")
    A(f"s_lshl_b32 {s('bhA')}, {s('bp')}, 3")
    A(f"s_add_u32 {s('bhA')}, {s('bhA')}, {s('hkv')}")
    A(f"s_mov_b32 {s('msk')}, 0x00030003")
    A(f"s_mov_b32 s{S['msk']+1}, 0x00030003")
    A(f"v_lshlrev_b32 {v('dma')}, 4, {v('lane')}")
    A(f"v_and_b32 {v('c')}, 15, {v('lane')}")
    A(f"v_lshrrev_b32 {v('g')}, 4, {v('lane')}")
    A(f"v_mov_b32 {v('zero')}, 0")
    A("s_waitcnt lgkmcnt(0)")
    def srd(n, ptr, size):
        A(f"s_mov_b32 s{S[n]}, s{KA[ptr]}")
        A(f"s_and_b32 s{S[n]+1}, s{KA[ptr]+1}, 0xffff")
        A(f"s_mov_b32 s{S[n]+2}, {size}")
        A(f"s_mov_b32 s{S[n]+3}, 0x00020000")
    srd("WS", "ws", WS_SIZE)
    A(f"s_and_b32 s{KA['K']+1}, s{KA['K']+1}, 0xffff")
    A(f"s_and_b32 s{KA['V']+1}, s{KA['V']+1}, 0xffff")
    A(f"s_cmp_eq_u32 {s('wave')}, 4")
    A("s_cbranch_scc1 L_helper")

    srd("SRD", "K", 256 << 20)
    srd("W2", "wo", 4096 * 896)
    A(f"s_lshl_b32 {s('t0')}, {s('bhA')}, 22")
    A(f"s_mul_i32 {s('t1')}, {s('j')}, {nA*64*512}")
    A(f"s_mul_i32 {s('t2')}, {s('wave')}, {gran*1024}")
    A(f"s_add_u32 {s('off')}, {s('t0')}, {s('t1')}")
    A(f"s_add_u32 {s('off')}, {s('off')}, {s('t2')}")
    A(f"s_mov_b32 {s('rstart')}, {s('off')}")
    A(f"s_add_u32 {s('t0')}, {s('t0')}, {32 << 22}")
    A(f"s_mul_i32 {s('t1')}, {s('j')}, {nB*64*512}")
    A(f"s_add_u32 {s('startB')}, {s('t0')}, {s('t1')}")
    A(f"s_add_u32 {s('startB')}, {s('startB')}, {s('t2')}")
    A(f"s_add_u32 {s('pool')}, {s('t0')}, {8*nB*64*512}")
    A(f"s_mov_b32 {s('rem')}, {nA}")
    A(f"s_mov_b32 {s('rn')}, {nA}")
    A(f"s_mov_b32 {s('stride')}, {4*8192}")
    A(f"s_mov_b32 {s('half')}, {4*4096 if gran == 4 else 4096}")
    A(f"s_mov_b32 {s('phase')}, 0")
    A(f"s_mov_b32 {s('seg')}, 0")
    A(f"s_mul_i32 {s('rbase')}, {s('wave')}, {RING}")
    A(f"s_mov_b32 {s('lslot')}, {s('rbase')}")
    A(f"s_mov_b32 {s('cslot')}, {s('rbase')}")
    A(f"s_add_u32 {s('rend')}, {s('rbase')}, {RING}")
    A(f"s_mov_b32 {s('ldone')}, 0")
    A(f"s_mov_b32 {s('grant')}, 0")
    A(f"s_mov_b32 {s('done')}, 0")
    A(f"s_mov_b32 {s('tslot')}, 0")
    A(f"s_mov_b32 {s('inval')}, 0")
    A(f"s_mov_b32 {s('pend')}, 0")
    A(f"s_lshl_b32 {s('cnt')}, {s('grp')}, 8")
    A(f"s_add_u32 {s('cnt')}, {s('cnt')}, {WS_CNT}")
    A(f"s_mov_b32 {s('c1')}, {hex(f2u(C1))}")
    A(f"v_mov_b32 {v('tick')}, 1")
    if bar0: A("s_barrier")

    def issue_raw():
        t = newl("is")
        A(f"s_add_u32 {s('t0')}, {s('off')}, {s('half')}")
        for i in range(8):
            imm = (i % 4) * 1024
            A(f"s_add_u32 m0, {s('lslot')}, {i*PIECE - imm}")
            A("s_nop 0")
            so = s('off') if i < 4 else s('t0')
            A(f"buffer_load_dwordx4 {v('dma')}, {sq('SRD')}, {so} offen offset:{imm} nt lds")
        A(f"s_add_u32 {s('lslot')}, {s('lslot')}, {UNIT}")
        A(f"s_cmp_eq_u32 {s('lslot')}, {s('rend')}")
        A(f"s_cselect_b32 {s('lslot')}, {s('rbase')}, {s('lslot')}")
        A(f"s_add_u32 {s('off')}, {s('off')}, {s('stride')}")
        A(f"s_sub_u32 {s('rem')}, {s('rem')}, 1")
        A(f"s_cmp_lg_u32 {s('rem')}, 0")
        A(f"s_cbranch_scc1 {t}_done")
        A(f"s_cmp_eq_u32 {s('phase')}, 0")
        A(f"s_cbranch_scc0 {t}_nseg")
        A(f"s_mov_b32 s{S['SRD']}, s{KA['V']}")
        A(f"s_mov_b32 s{S['SRD']+1}, s{KA['V']+1}")
        A(f"s_mov_b32 {s('off')}, {s('rstart')}")
        A(f"s_mov_b32 {s('rem')}, {s('rn')}")
        A(f"s_mov_b32 {s('phase')}, 1")
        A(f"s_cmp_eq_u32 {s('seg')}, 1")
        A(f"s_cbranch_scc0 {t}_done")
        A(f"s_mov_b64 exec, {(1 << pre) - 1}")
        A(f"buffer_atomic_add {v('tick')}, {v('zero')}, {sq('WS')}, {s('cnt')} offen sc0 sc1")
        A("s_mov_b64 exec, -1")
        A(f"s_mov_b32 {s('pend')}, {pre}")
        A(f"s_branch {t}_done")
        A(f"{t}_nseg:")
        A(f"s_mov_b32 s{S['SRD']}, s{KA['K']}")
        A(f"s_mov_b32 s{S['SRD']+1}, s{KA['K']+1}")
        A(f"s_mov_b32 {s('phase')}, 0")
        A(f"s_add_u32 {s('seg')}, {s('seg')}, 1")
        A(f"s_cmp_eq_u32 {s('seg')}, 1")
        A(f"s_cbranch_scc0 {t}_dyn")
        A(f"s_mov_b32 {s('off')}, {s('startB')}")
        A(f"s_mov_b32 {s('rstart')}, {s('startB')}")
        A(f"s_mov_b32 {s('rem')}, {nB}")
        A(f"s_mov_b32 {s('rn')}, {nB}")
        A(f"s_branch {t}_done")
        A(f"{t}_dyn:")
        A(f"s_cmp_eq_u32 {s('pend')}, 0")
        A(f"s_cbranch_scc1 {t}_fin")
        A(f"v_readlane_b32 {s('t1')}, {v('tick')}, {s('tslot')}")
        A(f"s_sub_u32 {s('pend')}, {s('pend')}, 1")
        A(f"s_mov_b32 {s('t2')}, {s('tslot')}")
        A(f"s_add_u32 {s('tslot')}, {s('tslot')}, 1")
        A(f"s_cmp_eq_u32 {s('tslot')}, {pre}")
        A(f"s_cselect_b32 {s('tslot')}, 0, {s('tslot')}")
        A(f"s_cmp_lt_u32 {s('t1')}, {NT}")
        A(f"s_cbranch_scc1 {t}_valid")
        A(f"s_mov_b32 {s('inval')}, 1")
        A("s_waitcnt vmcnt(0)")
        A(f"s_branch {t}_dyn")
        A(f"{t}_valid:")
        A(f"s_cmp_eq_u32 {s('inval')}, 0")
        A(f"s_cbranch_scc0 {t}_noreq")
        A(f"s_lshl_b64 exec, 1, {s('t2')}")
        A(f"v_mov_b32 {v('tick')}, 1")
        A(f"buffer_atomic_add {v('tick')}, {v('zero')}, {sq('WS')}, {s('cnt')} offen sc0 sc1")
        A("s_mov_b64 exec, -1")
        A(f"s_add_u32 {s('pend')}, {s('pend')}, 1")
        A(f"{t}_noreq:")
        A(f"s_mul_i32 {s('off')}, {s('t1')}, {tk*8192}")
        A(f"s_add_u32 {s('off')}, {s('off')}, {s('pool')}")
        A(f"s_mov_b32 {s('rstart')}, {s('off')}")
        A(f"s_mov_b32 {s('rem')}, {tk}")
        A(f"s_mov_b32 {s('rn')}, {tk}")
        A(f"s_mov_b32 {s('stride')}, 8192")
        A(f"s_mov_b32 {s('half')}, 4096")
        A(f"s_add_u32 {s('grant')}, {s('grant')}, 1")
        A(f"s_branch {t}_done")
        A(f"{t}_fin:")
        A(f"s_mov_b32 {s('ldone')}, 1")
        A(f"{t}_done:")

    def wait_issue():
        t = newl("wi")
        A(f"s_cmp_eq_u32 {s('ldone')}, 0")
        A(f"s_cbranch_scc1 {t}_a")
        A("s_waitcnt vmcnt(0)")
        A(f"s_branch {t}_e")
        A(f"{t}_a:")
        A(f"s_waitcnt vmcnt({8*(C-1)})")
        A(f"s_cmp_eq_u32 {s('skip')}, 0")
        A(f"s_cbranch_scc1 {t}_b")
        A(f"s_sub_u32 {s('skip')}, {s('skip')}, 1")
        A(f"s_branch {t}_e")
        A(f"{t}_b:")
        issue_raw()
        A(f"{t}_e:")

    def adv_cslot():
        A(f"s_add_u32 {s('cslot')}, {s('cslot')}, {UNIT}")
        A(f"s_cmp_eq_u32 {s('cslot')}, {s('rend')}")
        A(f"s_cselect_b32 {s('cslot')}, {s('rbase')}, {s('cslot')}")

    for u in range(C):
        issue_raw()
    A(f"v_and_b32 {v('t0')}, 7, {v('c')}")
    A(f"v_mul_u32_u24 {v('krd')}, {PIECE}, {v('t0')}")
    A(f"v_lshrrev_b32 {v('t0')}, 3, {v('c')}")
    A(f"v_lshl_add_u32 {v('krd')}, {v('t0')}, 9, {v('krd')}")
    A(f"v_lshl_add_u32 {v('krd')}, {v('g')}, 4, {v('krd')}")
    A(f"v_lshrrev_b32 {v('t0')}, 2, {v('lane')}")
    A(f"v_and_b32 {v('t0')}, 7, {v('t0')}")
    A(f"v_mul_u32_u24 {v('vrd')}, {PIECE}, {v('t0')}")
    A(f"v_lshrrev_b32 {v('t0')}, 5, {v('lane')}")
    A(f"v_lshl_add_u32 {v('vrd')}, {v('t0')}, 9, {v('vrd')}")
    A(f"v_and_b32 {v('t0')}, 3, {v('lane')}")
    A(f"v_lshl_add_u32 {v('vrd')}, {v('t0')}, 3, {v('vrd')}")
    A(f"v_and_b32 {v('t0')}, 1, {v('c')}")
    A(f"v_lshlrev_b32 {v('sad')}, 10, {v('t0')}")
    A(f"v_lshl_add_u32 {v('sad')}, {v('g')}, 4, {v('sad')}")
    A(f"s_lshl_b32 {s('t3')}, {s('wave')}, 11")
    A(f"s_add_u32 {s('t3')}, {s('t3')}, {L_X}")
    A(f"v_add_u32 {v('sad')}, {s('t3')}, {v('sad')}")
    for u in range(C, R):
        A(f"s_waitcnt vmcnt({8*(C-1)})")
        issue_raw()
    stage = [V['kf'], V['o'], V['o'] + 32, V['x']][:NS]
    for k in range(NS):
        A(f"s_waitcnt vmcnt({8*(C-1)})")
        A(f"v_add_u32 {v('ta')}, {s('cslot')}, {v('krd')}")
        for jj in range(8):
            A(f"ds_read_b128 v[{stage[k]+4*jj}:{stage[k]+4*jj+3}], {v('ta')} offset:{jj*64}")
        adv_cslot()
        A("s_waitcnt lgkmcnt(0)")
        issue_raw()
    A(f"s_mov_b32 {s('skip')}, {R-C}")
    if stamps: A(f"s_memrealtime {sp('st1')}")
    A("s_barrier")
    if stamps: A(f"s_memrealtime {sp('st2')}")

    def load_q(seg):
        A(f"v_and_b32 {v('t0')}, 1, {v('c')}")
        A(f"v_lshlrev_b32 {v('t0')}, 9, {v('t0')}")
        A(f"v_lshl_add_u32 {v('t0')}, {v('g')}, 4, {v('t0')}")
        A(f"v_add_u32 {v('t0')}, {L_Q + seg*1024}, {v('t0')}")
        for jj in range(8):
            A(f"ds_read_b128 {vr('q', 4*jj, 4)}, {v('t0')} offset:{jj*64}")
        A("s_waitcnt lgkmcnt(0)")

    def qk(base):
        for jj in range(8):
            cc = "0" if jj == 0 else vr('acc', 0, 4)
            A(f"v_mfma_f32_16x16x32_bf16 {vr('acc',0,4)}, v[{base+4*jj}:{base+4*jj+3}], {vr('q',4*jj,4)}, {cc}")

    def s_store(addr_v, off):
        A("s_nop 7")
        A("s_nop 1")
        A(f"v_max3_f32 {v('smax')}, {v('acc',0)}, {v('acc',1)}, {v('smax')}")
        A(f"v_max3_f32 {v('smax')}, {v('acc',2)}, {v('acc',3)}, {v('smax')}")
        A(f"s_mov_b64 exec, {sp('msk')}")
        A(f"ds_write_b128 {addr_v}, {vr('acc',0,4)} offset:{off}")
        A("s_mov_b64 exec, -1")

    def init_state():
        for i in range(64):
            A(f"v_mov_b32 {v('o', i)}, 0")
        A(f"v_mov_b32 {v('m')}, {hex(NEGBIG)}")
        A(f"v_mov_b32 {v('l')}, 0")

    def xrow(op, reg, tmp):
        for sw in ("v_permlane16_swap_b32", "v_permlane32_swap_b32"):
            A(f"v_mov_b32 {tmp}, {reg}")
            A("s_nop 1")
            A(f"{sw} {reg}, {tmp}")
            A("s_nop 1")
            A(f"{op} {reg}, {reg}, {tmp}")

    load_q(0)
    A(f"v_mov_b32 {v('smax')}, {hex(NEGBIG)}")
    for k in range(NS):
        qk(stage[k])
        s_store(v('sad'), k * 64)
        A("s_nop 3")
    init_state()
    A(f"s_mov_b32 {s('n')}, {nA}")
    A(f"s_mov_b32 {s('u')}, {NS}")
    A(f"s_mov_b32 {s('cseg')}, 0")
    A("s_branch L_kloop")

    A("L_seg:")
    A(f"v_mov_b32 {v('smax')}, {hex(NEGBIG)}")
    A(f"s_mov_b32 {s('u')}, 0")
    A("L_kloop:")
    wait_issue()
    A(f"v_add_u32 {v('ta')}, {s('cslot')}, {v('krd')}")
    for jj in range(8):
        A(f"ds_read_b128 {vr('kf',4*jj,4)}, {v('ta')} offset:{jj*64}")
    adv_cslot()
    A(f"s_lshl_b32 {s('t3')}, {s('u')}, 6")
    A(f"v_add_u32 {v('tb')}, {s('t3')}, {v('sad')}")
    for jj in range(8):
        A(f"s_waitcnt lgkmcnt({7-jj})")
        cc = "0" if jj == 0 else vr('acc', 0, 4)
        A(f"v_mfma_f32_16x16x32_bf16 {vr('acc',0,4)}, {vr('kf',4*jj,4)}, {vr('q',4*jj,4)}, {cc}")
    s_store(v('tb'), 0)
    A(f"s_add_u32 {s('u')}, {s('u')}, 1")
    A(f"s_cmp_lt_u32 {s('u')}, {s('n')}")
    A("s_cbranch_scc1 L_kloop")
    xrow("v_max_f32", v('smax'), v('t0'))
    A(f"v_max_f32 {v('smax')}, {v('smax')}, {v('m')}")
    A(f"v_sub_f32 {v('t0')}, {v('m')}, {v('smax')}")
    A(f"v_mul_f32 {v('t0')}, {s('c1')}, {v('t0')}")
    A(f"v_exp_f32 {v('t0')}, {v('t0')}")
    A(f"v_mov_b32 {v('m')}, {v('smax')}")
    A(f"v_mul_f32 {v('mc')}, {s('c1')}, {v('smax')}")
    A(f"v_mul_f32 {v('l')}, {v('l')}, {v('t0')}")
    for i in range(64):
        A(f"v_mul_f32 {v('o', i)}, {v('o', i)}, {v('t0')}")
    A(f"s_mov_b32 {s('u')}, 0")
    A("L_vloop:")
    wait_issue()
    A(f"s_lshl_b32 {s('t3')}, {s('u')}, 6")
    A(f"v_add_u32 {v('tb')}, {s('t3')}, {v('sad')}")
    A(f"v_add_u32 {v('ta')}, {s('cslot')}, {v('vrd')}")
    A(f"ds_read_b128 {vr('s4',0,4)}, {v('tb')}")
    for dt in range(16):
        A(f"ds_read_b64_tr_b16 {vr('kf',2*dt,2)}, {v('ta')} offset:{dt*32}")
    adv_cslot()
    A("s_waitcnt lgkmcnt(15)")
    for i in range(4):
        A(f"v_fma_f32 {v('s4',i)}, {v('s4',i)}, {s('c1')}, -{v('mc')}")
    for i in range(4):
        A(f"v_exp_f32 {v('s4',i)}, {v('s4',i)}")
    A("s_nop 0")
    A(f"v_cvt_pk_bf16_f32 {v('p',0)}, {v('s4',0)}, {v('s4',1)}")
    A(f"v_cvt_pk_bf16_f32 {v('p',1)}, {v('s4',2)}, {v('s4',3)}")
    A(f"v_lshlrev_b32 {v('t0')}, 16, {v('p',0)}")
    A(f"v_and_b32 {v('t1')}, 0xffff0000, {v('p',0)}")
    A(f"v_lshlrev_b32 {v('t2')}, 16, {v('p',1)}")
    A(f"v_and_b32 {v('t3')}, 0xffff0000, {v('p',1)}")
    A(f"v_add_f32 {v('t0')}, {v('t0')}, {v('t1')}")
    A(f"v_add_f32 {v('t2')}, {v('t2')}, {v('t3')}")
    A(f"v_add_f32 {v('t0')}, {v('t0')}, {v('t2')}")
    A(f"v_add_f32 {v('l')}, {v('l')}, {v('t0')}")
    for dt in range(16):
        A(f"s_waitcnt lgkmcnt({15-dt})")
        A(f"v_mfma_f32_16x16x16_bf16 {vr('o',4*dt,4)}, {vr('kf',2*dt,2)}, {vr('p',0,2)}, {vr('o',4*dt,4)}")
    A(f"s_add_u32 {s('u')}, {s('u')}, 1")
    A(f"s_cmp_lt_u32 {s('u')}, {s('n')}")
    A("s_cbranch_scc1 L_vloop")

    def write_partial(base_s, cnt_off):
        A("s_nop 15")
        A(f"v_mov_b32 {v('t1')}, {v('l')}")
        xrow("v_add_f32", v('t1'), v('t0'))
        A(f"v_mov_b32 {v('t0')}, {v('mc')}")
        A(f"v_lshlrev_b32 {v('ta')}, 10, {v('c')}")
        A(f"v_lshl_add_u32 {v('ta')}, {v('g')}, 4, {v('ta')}")
        A(f"v_add_u32 {v('ta')}, {base_s}, {v('ta')}")
        A(f"v_lshlrev_b32 {v('tb')}, 3, {v('c')}")
        A(f"v_add_u32 {v('tb')}, {base_s}, {v('tb')}")
        A(f"s_mov_b64 exec, {sp('msk')}")
        for dt in range(16):
            A(f"ds_write_b128 {v('ta')}, {vr('o',4*dt,4)} offset:{dt*64}")
        A("s_mov_b64 exec, 3")
        A(f"ds_write_b64 {v('tb')}, {vr('t0',0,2)} offset:2048")
        A("s_mov_b64 exec, 1")
        A(f"v_mov_b32 {v('t2')}, 1")
        A(f"v_mov_b32 {v('t3')}, {L_CNT + cnt_off}")
        A("s_waitcnt lgkmcnt(0)")
        A(f"ds_add_u32 {v('t3')}, {v('t2')}")
        A("s_mov_b64 exec, -1")

    A(f"s_cmp_eq_u32 {s('cseg')}, 0")
    A("s_cbranch_scc0 L_segB")
    A(f"s_mul_i32 {s('t3')}, {s('wave')}, {PREC}")
    A(f"s_add_u32 {s('t3')}, {s('t3')}, {L_P}")
    write_partial(s('t3'), 0)
    init_state()
    load_q(1)
    A(f"s_mov_b32 {s('cseg')}, 1")
    A(f"s_mov_b32 {s('n')}, {nB}")
    A("s_branch L_seg")
    A("L_segB:")
    A(f"s_cmp_lt_u32 {s('done')}, {s('grant')}")
    A("s_cbranch_scc0 L_sdone")
    A(f"s_add_u32 {s('done')}, {s('done')}, 1")
    A(f"s_mov_b32 {s('n')}, {tk}")
    A("s_nop 7")
    A("s_branch L_seg")
    A("L_sdone:")
    if stamps: A(f"s_memrealtime {sp('st3')}")
    A(f"v_mul_u32_u24 {v('t4')}, 896, {v('g')}")
    A(f"v_lshl_add_u32 {v('t4')}, {v('c')}, 4, {v('t4')}")
    A(f"s_lshl_b32 {s('t0')}, {s('hkv')}, 3")
    A(f"s_add_u32 {s('t0')}, {s('t0')}, {s('j')}")
    A(f"s_mul_i32 {s('t1')}, {s('t0')}, {64*896}")
    A(f"s_mul_i32 {s('t2')}, {s('wave')}, 224")
    A(f"s_add_u32 {s('t1')}, {s('t1')}, {s('t2')}")
    for i in range(16):
        A(f"s_add_u32 m0, {s('rbase')}, {i*PIECE}")
        A(f"s_add_u32 {s('t2')}, {s('t1')}, {i*3584}")
        A(f"buffer_load_dwordx4 {v('t4')}, {sq('W2')}, {s('t2')} offen lds")
    A(f"s_add_u32 {s('t3')}, {s('rbase')}, {2*UNIT}")
    write_partial(s('t3'), 4)
    A(f"v_mul_u32_u24 {v('ta')}, {2*PIECE}, {v('g')}")
    A(f"v_lshrrev_b32 {v('t0')}, 2, {v('c')}")
    A(f"v_lshl_add_u32 {v('ta')}, {v('t0')}, 8, {v('ta')}")
    A(f"v_and_b32 {v('t0')}, 3, {v('c')}")
    A(f"v_lshl_add_u32 {v('ta')}, {v('t0')}, 3, {v('ta')}")
    A(f"v_add_u32 {v('ta')}, {s('rbase')}, {v('ta')}")
    A(f"v_and_b32 {v('t0')}, 1, {v('c')}")
    A(f"v_lshlrev_b32 {v('tb')}, 7, {v('t0')}")
    A(f"v_lshl_add_u32 {v('tb')}, {v('g')}, 4, {v('tb')}")
    A(f"v_add_u32 {v('tb')}, {L_O}, {v('tb')}")
    A(f"v_lshlrev_b32 {v('t5')}, 19, {v('c')}")
    A(f"v_lshl_add_u32 {v('t5')}, {v('g')}, 4, {v('t5')}")
    A(f"s_lshl_b32 {s('t1')}, {s('bp')}, 5")
    A(f"s_mul_i32 {s('t2')}, {s('wave')}, 7")
    A(f"s_add_u32 {s('t1')}, {s('t1')}, {s('t2')}")
    A(f"s_lshl_b32 {s('t1')}, {s('t1')}, 6")
    A(f"s_add_u32 {s('t1')}, {s('t1')}, {s('t0')}")
    A(f"s_lshl_b32 {s('t1')}, {s('t1')}, 6")
    A(f"s_add_u32 {s('t1')}, {s('t1')}, {WS_FIN}")
    A("s_waitcnt vmcnt(0)")
    for nt in range(7):
        for ks in range(2):
            for h in range(2):
                r = V['o'] + (nt * 2 + ks) * 4 + h * 2
                A(f"ds_read_b64_tr_b16 v[{r}:{r+1}], {v('ta')} offset:{ks*UNIT + h*PIECE + nt*32}")
    A("s_waitcnt lgkmcnt(0)")
    A("s_barrier")
    A(f"ds_read_b128 {vr('q',0,4)}, {v('tb')}")
    A(f"ds_read_b128 {vr('q',4,4)}, {v('tb')} offset:64")
    A("s_waitcnt lgkmcnt(0)")
    for nt in range(7):
        for ks in range(2):
            r = V['o'] + (nt * 2 + ks) * 4
            cc = "0" if ks == 0 else vr('kf', 4 * nt, 4)
            A(f"v_mfma_f32_16x16x32_bf16 {vr('kf',4*nt,4)}, v[{r}:{r+3}], {vr('q',4*ks,4)}, {cc}")
    A("s_nop 7")
    A("s_nop 3")
    for i in range(28):
        A(f"v_min_u32 {v('kf',i)}, 0xfffffffe, {v('kf',i)}")
    A(f"s_mov_b64 exec, {sp('msk')}")
    for nt in range(7):
        A(f"s_add_u32 {s('t2')}, {s('t1')}, {nt*4096}")
        A(f"buffer_store_dwordx4 {vr('kf',4*nt,4)}, {v('t5')}, {sq('WS')}, {s('t2')} offen sc1")
    A("s_mov_b64 exec, -1")
    if stamps:
        A(f"s_memrealtime {sp('st4')}")
        A("s_branch L_stamps")
    A("s_endpgm")

    A("L_helper:")
    if prio: A(f"s_setprio {prio}")
    srd("W2", "wq", 448 * 8192)
    srd("DBG", "dbg", 256)
    srd("XO", "x", 8 * 896)
    H = dict(xf=32, wf=96, acc=100, a=104, b=105, c=106, d=107, e=108, f=109, sent=112, ml=116, po=120, w=152, t=160)
    h = lambda n, i=0: f"v{H[n]+i}"
    hr = lambda n, i, k: f"v[{H[n]+i}:{H[n]+i+k-1}]"
    A(f"s_lshl_b32 {s('t0')}, {s('hkv')}, 5")
    A(f"s_lshl_b32 {s('t1')}, {s('j')}, 2")
    A(f"s_add_u32 {s('t0')}, {s('t0')}, {s('t1')}")
    A(f"s_add_u32 {s('t0')}, {s('t0')}, {s('bp')}")
    A(f"s_lshl_b32 {s('off')}, {s('t0')}, 5")
    A(f"v_lshrrev_b32 {h('a')}, 1, {v('lane')}")
    A(f"v_lshlrev_b32 {h('a')}, 13, {h('a')}")
    A(f"v_and_b32 {h('b')}, 1, {v('lane')}")
    A(f"v_lshl_add_u32 {h('a')}, {h('b')}, 4, {h('a')}")
    for i in range(14):
        A(f"s_mov_b32 m0, {L_X + i*1024}")
        A(f"s_add_u32 {s('t1')}, {s('off')}, {i*32*8192}")
        A(f"buffer_load_dwordx4 {h('a')}, {sq('W2')}, {s('t1')} offen lds")
    A(f"v_and_b32 {h('b')}, 7, {v('c')}")
    A(f"v_mul_u32_u24 {h('b')}, 896, {h('b')}")
    A(f"v_lshl_add_u32 {h('b')}, {v('g')}, 4, {h('b')}")
    for ks in range(14):
        A(f"buffer_load_dwordx4 {hr('xf',4*ks,4)}, {h('b')}, {sq('XO')}, 0 offen offset:{ks*64}")
    if bar0: A("s_barrier")
    for i in range(4):
        A(f"v_mov_b32 {h('sent',i)}, -1")
    A(f"s_lshl_b32 {s('t0')}, {s('bhA')}, 3")
    A(f"s_add_u32 {s('t0')}, {s('t0')}, {s('j')}")
    A(f"s_lshl_b32 {s('rstart')}, {s('t0')}, 11")
    A(f"s_add_u32 {s('rstart')}, {s('rstart')}, {WS_PO}")
    A(f"s_add_u32 {s('rn')}, {s('rstart')}, {256*2048}")
    A(f"s_lshl_b32 {s('stride')}, {s('t0')}, 6")
    A(f"s_add_u32 {s('stride')}, {s('stride')}, {WS_ML}")
    A(f"s_add_u32 {s('half')}, {s('stride')}, {256*64}")
    A(f"s_lshl_b32 {s('pool')}, s2, 12")
    A(f"s_add_u32 {s('pool')}, {s('pool')}, {WS_FIN}")
    for base in ('rstart', 'rn'):
        for t in range(2):
            A(f"buffer_store_dwordx4 {hr('sent',0,4)}, {v('dma')}, {sq('WS')}, {s(base)} offen offset:{t*1024} sc1")
    for t in range(4):
        A(f"buffer_store_dwordx4 {hr('sent',0,4)}, {v('dma')}, {sq('WS')}, {s('pool')} offen offset:{t*1024} sc1")
    A("s_mov_b64 exec, 15")
    A(f"buffer_store_dwordx4 {hr('sent',0,4)}, {v('dma')}, {sq('WS')}, {s('stride')} offen sc1")
    A(f"buffer_store_dwordx4 {hr('sent',0,4)}, {v('dma')}, {sq('WS')}, {s('half')} offen sc1")
    A("s_mov_b64 exec, 1")
    A(f"s_cmp_eq_u32 {s('j')}, 0")
    A("s_cbranch_scc0 L_h_nocnt")
    A(f"s_lshl_b32 {s('t1')}, {s('grp')}, 8")
    A(f"s_add_u32 {s('t1')}, {s('t1')}, {WS_CNT}")
    A(f"buffer_store_dword {v('zero')}, {v('zero')}, {sq('WS')}, {s('t1')} offen sc1")
    A("L_h_nocnt:")
    A(f"v_mov_b32 {h('c')}, {L_CNT}")
    A(f"v_mov_b32 {h('e')}, 0")
    A(f"v_mov_b32 {h('f')}, 0")
    A(f"ds_write_b64 {h('c')}, {hr('e',0,2)}")
    A("s_mov_b64 exec, -1")
    A(f"v_lshrrev_b32 {h('c')}, 2, {v('c')}")
    A(f"v_lshl_add_u32 {h('c')}, {v('g')}, 3, {h('c')}")
    A(f"v_lshlrev_b32 {h('c')}, 5, {h('c')}")
    A(f"v_and_b32 {h('d')}, 3, {v('c')}")
    A(f"v_lshl_add_u32 {h('c')}, {h('d')}, 3, {h('c')}")
    A(f"v_add_u32 {h('c')}, {L_X}, {h('c')}")
    A(f"v_lshlrev_b32 {h('d')}, 13, {v('c')}")
    A(f"v_lshl_add_u32 {h('d')}, {v('g')}, 3, {h('d')}")
    A("s_waitcnt vmcnt(0)")
    if stamps: A(f"s_memrealtime {sp('st1')}")
    for ks in range(14):
        r = H['po'] + (ks % 4) * 4
        A(f"ds_read_b64_tr_b16 v[{r}:{r+1}], {h('c')} offset:{ks*1024}")
        A(f"ds_read_b64_tr_b16 v[{r+2}:{r+3}], {h('c')} offset:{ks*1024 + 128}")
        A("s_waitcnt lgkmcnt(0)")
        cc = "0" if ks == 0 else hr('acc', 0, 4)
        A(f"v_mfma_f32_16x16x32_bf16 {hr('acc',0,4)}, v[{r}:{r+3}], {hr('xf',4*ks,4)}, {cc}")
    A("s_nop 7")
    A("s_nop 3")
    A(f"v_cvt_pk_bf16_f32 {h('e')}, {h('acc',0)}, {h('acc',1)}")
    A(f"v_cvt_pk_bf16_f32 {h('f')}, {h('acc',2)}, {h('acc',3)}")
    A("s_mov_b32 exec_lo, 0x00ff00ff")
    A("s_mov_b32 exec_hi, 0x00ff00ff")
    A(f"buffer_store_dwordx2 {hr('e',0,2)}, {h('d')}, {sq('WS')}, {s('off')} offen sc1")
    A("s_waitcnt vmcnt(0)")
    A("s_mov_b64 exec, 1")
    A(f"v_mov_b32 {h('e')}, 1")
    A(f"s_lshl_b32 {s('cnt')}, {s('hkv')}, 5")
    A(f"buffer_atomic_add {h('e')}, {v('zero')}, {sq('DBG')}, {s('cnt')} offen sc1")
    A(f"s_mov_b32 {s('spin')}, 0")
    A("L_h_pollq:")
    A(f"buffer_load_dword {h('f')}, {v('zero')}, {sq('DBG')}, {s('cnt')} offen sc1")
    A("s_waitcnt vmcnt(0)")
    A(f"v_readfirstlane_b32 {s('t1')}, {h('f')}")
    A("s_nop 1")
    A(f"s_cmp_eq_u32 {s('t1')}, 32")
    A("s_cbranch_scc1 L_h_gotq")
    A(f"s_sleep {hsleep}")
    A(f"s_add_u32 {s('spin')}, {s('spin')}, 1")
    A(f"s_cmp_lt_u32 {s('spin')}, {spin}")
    A("s_cbranch_scc1 L_h_pollq")
    A("L_h_gotq:")
    A("s_mov_b64 exec, -1")
    A(f"s_lshl_b32 {s('t1')}, {s('bp')}, 13")
    A(f"s_lshl_b32 {s('t2')}, {s('hkv')}, 10")
    A(f"s_add_u32 {s('t1')}, {s('t1')}, {s('t2')}")
    A(f"s_add_u32 {s('t2')}, {s('t1')}, {4*8192}")
    A(f"buffer_load_dwordx4 {hr('po',0,4)}, {v('dma')}, {sq('WS')}, {s('t1')} offen sc1")
    A(f"buffer_load_dwordx4 {hr('po',4,4)}, {v('dma')}, {sq('WS')}, {s('t2')} offen sc1")
    A("s_waitcnt vmcnt(0)")
    A(f"v_add_u32 {h('a')}, {L_Q}, {v('dma')}")
    A(f"ds_write_b128 {h('a')}, {hr('po',0,4)}")
    A(f"ds_write_b128 {h('a')}, {hr('po',4,4)} offset:1024")
    A("s_waitcnt lgkmcnt(0)")
    if stamps: A(f"s_memrealtime {sp('st2')}")
    A("s_barrier")

    srd("XO", "out", 3584 * 2)
    A(f"v_lshlrev_b32 {h('a')}, 5, {v('lane')}")
    A(f"v_lshrrev_b32 {h('b')}, 5, {v('lane')}")
    A(f"v_lshlrev_b32 {h('b')}, 3, {h('b')}")
    A(f"v_lshrrev_b32 {h('c')}, 3, {v('lane')}")
    A(f"v_lshlrev_b32 {h('d')}, 6, {h('c')}")
    A(f"v_lshlrev_b32 {h('c')}, 11, {h('c')}")
    A(f"v_and_b32 {h('e')}, 7, {v('lane')}")
    A(f"v_lshl_add_u32 {h('c')}, {h('e')}, 5, {h('c')}")
    A(f"v_mov_b32 {h('f')}, {L_CNT}")

    def wg_combine(seg):
        t = newl("hc")
        A(f"s_mov_b32 {s('spin')}, 0")
        A(f"{t}_poll:")
        A(f"ds_read_b32 {h('e')}, {h('f')} offset:{seg*4}")
        A("s_waitcnt lgkmcnt(0)")
        A(f"v_readfirstlane_b32 {s('t1')}, {h('e')}")
        A("s_nop 1")
        A(f"s_cmp_eq_u32 {s('t1')}, 4")
        A(f"s_cbranch_scc1 {t}_go")
        A(f"s_sleep {4 if seg == 0 else 1}")
        A(f"s_add_u32 {s('spin')}, {s('spin')}, 1")
        A(f"s_cmp_lt_u32 {s('spin')}, {spin*4}")
        A(f"s_cbranch_scc1 {t}_poll")
        A(f"{t}_go:")
        bases = [L_P + w * PREC for w in range(4)] if seg == 0 else [w * RING + 2 * UNIT for w in range(4)]
        for w in range(4):
            A(f"v_add_u32 {h('t',0)}, {bases[w]}, {h('a')}")
            A(f"v_add_u32 {h('t',1)}, {bases[w]}, {h('b')}")
            A(f"ds_read_b128 {hr('po',8*w,4)}, {h('t',0)}")
            A(f"ds_read_b128 {hr('po',8*w+4,4)}, {h('t',0)} offset:16")
            A(f"ds_read_b64 {hr('w',2*w,2)}, {h('t',1)} offset:2048")
        A("s_waitcnt lgkmcnt(0)")
        A(f"v_max_f32 {h('ml',0)}, {h('w',0)}, {h('w',2)}")
        A(f"v_max3_f32 {h('ml',0)}, {h('w',4)}, {h('w',6)}, {h('ml',0)}")
        for w in range(4):
            A(f"v_sub_f32 {h('w',2*w)}, {h('w',2*w)}, {h('ml',0)}")
        for w in range(4):
            A(f"v_exp_f32 {h('w',2*w)}, {h('w',2*w)}")
        A("s_nop 0")
        A(f"v_mul_f32 {h('ml',1)}, {h('w',0)}, {h('w',1)}")
        for w in range(1, 4):
            A(f"v_fmac_f32 {h('ml',1)}, {h('w',2*w)}, {h('w',2*w+1)}")
        for i in range(8):
            A(f"v_mul_f32 {h('po',i)}, {h('po',i)}, {h('w',0)}")
            for w in range(1, 4):
                A(f"v_fmac_f32 {h('po',i)}, {h('po',8*w+i)}, {h('w',2*w)}")
            A(f"v_min_u32 {h('po',i)}, 0xfffffffe, {h('po',i)}")
        A(f"v_min_u32 {h('ml',0)}, 0xfffffffe, {h('ml',0)}")
        A(f"v_min_u32 {h('ml',1)}, 0xfffffffe, {h('ml',1)}")
        A(f"s_add_u32 {s('t1')}, {s('bhA')}, {32*seg}")
        A(f"s_lshl_b32 {s('t2')}, {s('t1')}, 14")
        A(f"s_lshl_b32 {s('t3')}, {s('j')}, 8")
        A(f"s_add_u32 {s('t2')}, {s('t2')}, {s('t3')}")
        A(f"s_add_u32 {s('t2')}, {s('t2')}, {WS_PO}")
        A(f"buffer_store_dwordx4 {hr('po',0,4)}, {h('c')}, {sq('WS')}, {s('t2')} offen sc1")
        A(f"buffer_store_dwordx4 {hr('po',4,4)}, {h('c')}, {sq('WS')}, {s('t2')} offen offset:16 sc1")
        A(f"s_lshl_b32 {s('t2')}, {s('t1')}, 9")
        A(f"s_lshl_b32 {s('t3')}, {s('j')}, 3")
        A(f"s_add_u32 {s('t2')}, {s('t2')}, {s('t3')}")
        A(f"s_add_u32 {s('t2')}, {s('t2')}, {WS_ML}")
        A("s_mov_b32 exec_lo, 0x01010101")
        A("s_mov_b32 exec_hi, 0x01010101")
        A(f"buffer_store_dwordx2 {hr('ml',0,2)}, {h('d')}, {sq('WS')}, {s('t2')} offen sc1")
        A("s_mov_b64 exec, -1")

    wg_combine(0)
    A(f"v_lshlrev_b32 {h('t',2)}, 5, {v('lane')}")
    A(f"s_mov_b32 {s('spin')}, 0")
    A("L_h_pollall:")
    A("s_mov_b64 exec, 0xff")
    A(f"buffer_load_dword {h('e')}, {h('t',2)}, {sq('DBG')}, 0 offen sc1")
    A("s_waitcnt vmcnt(0)")
    A(f"v_cmp_ne_u32 vcc, 32, {h('e')}")
    A("s_mov_b64 exec, -1")
    A("s_nop 1")
    A("s_cmp_eq_u64 vcc, 0")
    A("s_cbranch_scc1 L_h_allok")
    A("s_sleep 8")
    A(f"s_add_u32 {s('spin')}, {s('spin')}, 1")
    A(f"s_cmp_lt_u32 {s('spin')}, {spin}")
    A("s_cbranch_scc1 L_h_pollall")
    A("L_h_allok:")
    wg_combine(1)
    if stamps: A(f"s_memrealtime {sp('st3')}")
    A(f"v_and_b32 {h('a')}, 7, {v('lane')}")
    A(f"v_lshlrev_b32 {h('a')}, 3, {h('a')}")
    A(f"s_mov_b32 {s('spin')}, 0")
    A("L_h_gather:")
    A(f"buffer_load_dwordx2 {hr('ml',0,2)}, {h('a')}, {sq('WS')}, {s('stride')} offen sc1")
    A(f"buffer_load_dwordx2 {hr('ml',2,2)}, {h('a')}, {sq('WS')}, {s('half')} offen sc1")
    A(f"buffer_load_dwordx4 {hr('po',0,4)}, {v('dma')}, {sq('WS')}, {s('rstart')} offen sc1")
    A(f"buffer_load_dwordx4 {hr('po',4,4)}, {v('dma')}, {sq('WS')}, {s('rstart')} offen offset:1024 sc1")
    A(f"buffer_load_dwordx4 {hr('po',8,4)}, {v('dma')}, {sq('WS')}, {s('rn')} offen sc1")
    A(f"buffer_load_dwordx4 {hr('po',12,4)}, {v('dma')}, {sq('WS')}, {s('rn')} offen offset:1024 sc1")
    A("s_waitcnt vmcnt(0)")
    A(f"v_max3_u32 {h('e')}, {h('ml',0)}, {h('ml',1)}, {h('ml',2)}")
    A(f"v_max_u32 {h('e')}, {h('e')}, {h('ml',3)}")
    for i in range(8):
        A(f"v_max3_u32 {h('e')}, {h('po',2*i)}, {h('po',2*i+1)}, {h('e')}")
    A(f"v_cmp_eq_u32 vcc, -1, {h('e')}")
    A("s_nop 1")
    A("s_cmp_eq_u64 vcc, 0")
    A("s_cbranch_scc1 L_h_gathered")
    A("s_sleep 1")
    A(f"s_add_u32 {s('spin')}, {s('spin')}, 1")
    A(f"s_cmp_lt_u32 {s('spin')}, {spin}")
    A("s_cbranch_scc1 L_h_gather")
    A("L_h_gathered:")
    def dpp8(op, reg, tmp):
        for mod in ("quad_perm:[1,0,3,2]", "quad_perm:[2,3,0,1]", "row_half_mirror"):
            A("s_nop 1")
            A(f"{op}_dpp {tmp}, {reg}, {reg} {mod} row_mask:0xf bank_mask:0xf")
            A(f"v_mov_b32 {reg}, {tmp}")
    A(f"v_lshlrev_b32 {h('b')}, 2, {v('g')}")
    A(f"v_add_u32 {h('c')}, 16, {h('b')}")
    for seg in range(2):
        mm, ll = h('ml', 2 * seg), h('ml', 2 * seg + 1)
        A(f"v_mov_b32 {h('e')}, {mm}")
        dpp8("v_max_f32", h('e'), h('f'))
        A(f"v_sub_f32 {mm}, {mm}, {h('e')}")
        A(f"v_exp_f32 {mm}, {mm}")
        A("s_nop 0")
        A(f"v_mul_f32 {ll}, {ll}, {mm}")
        dpp8("v_add_f32", ll, h('f'))
        A(f"v_rcp_f32 {ll}, {ll}")
        A("s_nop 0")
        A(f"v_mul_f32 {mm}, {mm}, {ll}")
        A(f"ds_bpermute_b32 {h('w',0)}, {h('b')}, {mm}")
        A(f"ds_bpermute_b32 {h('w',1)}, {h('c')}, {mm}")
        A("s_waitcnt lgkmcnt(0)")
        for i in range(4):
            A(f"v_mul_f32 {h('po',8*seg+i)}, {h('po',8*seg+i)}, {h('w',0)}")
            A(f"v_fmac_f32 {h('po',8*seg+i)}, {h('po',8*seg+4+i)}, {h('w',1)}")
        for i in range(4):
            xrow("v_add_f32", h('po', 8 * seg + i), h('f'))
        A(f"v_cvt_pk_bf16_f32 {h('w',2+2*seg)}, {h('po',8*seg)}, {h('po',8*seg+1)}")
        A(f"v_cvt_pk_bf16_f32 {h('w',3+2*seg)}, {h('po',8*seg+2)}, {h('po',8*seg+3)}")
    A(f"v_lshlrev_b32 {h('a')}, 3, {v('c')}")
    A(f"v_add_u32 {h('a')}, {L_O}, {h('a')}")
    A("s_mov_b64 exec, 0xffff")
    A(f"ds_write_b64 {h('a')}, {hr('w',2,2)}")
    A(f"ds_write_b64 {h('a')}, {hr('w',4,2)} offset:128")
    A("s_mov_b64 exec, -1")
    A("s_waitcnt lgkmcnt(0)")
    A("s_barrier")
    if stamps: A(f"s_memrealtime {sp('st4')}")
    A(f"s_and_b32 {s('t0')}, s2, 31")
    A(f"s_cmp_ge_u32 {s('t0')}, 28")
    A(f"s_cbranch_scc1 {'L_stamps' if stamps else 'L_end'}")
    A(f"s_mov_b32 {s('spin')}, 0")
    A("L_h_fin:")
    for t in range(4):
        A(f"buffer_load_dwordx4 {hr('po',4*t,4)}, {v('dma')}, {sq('WS')}, {s('pool')} offen offset:{t*1024} sc1")
    A("s_waitcnt vmcnt(0)")
    A(f"v_max_u32 {h('e')}, {h('po',0)}, {h('po',1)}")
    for i in range(1, 8):
        A(f"v_max3_u32 {h('e')}, {h('po',2*i)}, {h('po',2*i+1)}, {h('e')}")
    A(f"v_cmp_eq_u32 vcc, -1, {h('e')}")
    A("s_nop 1")
    A("s_cmp_eq_u64 vcc, 0")
    A("s_cbranch_scc1 L_h_finok")
    A("s_sleep 1")
    A(f"s_add_u32 {s('spin')}, {s('spin')}, 1")
    A(f"s_cmp_lt_u32 {s('spin')}, {spin}")
    A("s_cbranch_scc1 L_h_fin")
    A("L_h_finok:")
    for i in range(4):
        A(f"v_add_f32 {h('po',i)}, {h('po',i)}, {h('po',4+i)}")
        A(f"v_add_f32 {h('po',8+i)}, {h('po',8+i)}, {h('po',12+i)}")
        A(f"v_add_f32 {h('po',i)}, {h('po',i)}, {h('po',8+i)}")
    for mod in ("row_ror:4", "row_ror:8"):
        A("s_nop 1")
        for i in range(4):
            A(f"v_add_f32_dpp {h('po',4+i)}, {h('po',i)}, {h('po',i)} {mod} row_mask:0xf bank_mask:0xf")
        for i in range(4):
            A(f"v_mov_b32 {h('po',i)}, {h('po',4+i)}")
    for i in range(4):
        xrow("v_add_f32", h('po', i), h('f'))
    A(f"v_cvt_pk_bf16_f32 {h('w',0)}, {h('po',0)}, {h('po',1)}")
    A(f"v_cvt_pk_bf16_f32 {h('w',1)}, {h('po',2)}, {h('po',3)}")
    A(f"s_lshr_b32 {s('t1')}, s2, 5")
    A(f"s_mul_i32 {s('t1')}, {s('t1')}, 896")
    A(f"s_lshl_b32 {s('t0')}, {s('t0')}, 5")
    A(f"s_add_u32 {s('t1')}, {s('t1')}, {s('t0')}")
    A(f"v_lshlrev_b32 {h('a')}, 3, {v('lane')}")
    A("s_mov_b64 exec, 15")
    A(f"buffer_store_dwordx2 {hr('w',0,2)}, {h('a')}, {sq('XO')}, {s('t1')} offen")
    A("s_mov_b64 exec, -1")
    if stamps:
        A("L_stamps:")
        A("s_waitcnt vmcnt(0)")
        A(f"s_memrealtime {sp('st5')}")
        A("s_waitcnt lgkmcnt(0)")
        for i in range(12):
            A(f"v_mov_b32 v{32+i}, s{S['st0']+i}")
        A(f"s_mul_i32 {s('t1')}, s2, 5")
        A(f"s_add_u32 {s('t1')}, {s('t1')}, {s('wave')}")
        A(f"s_lshl_b32 {s('t1')}, {s('t1')}, 6")
        A(f"s_add_u32 {s('t1')}, {s('t1')}, {WS_DBG}")
        A("s_mov_b64 exec, 1")
        for i in range(3):
            A(f"buffer_store_dwordx4 v[{32+4*i}:{35+4*i}], {v('zero')}, {sq('WS')}, {s('t1')} offen offset:{16*i}")
    A("L_end:")
    A("s_endpgm")
    A('.section .rodata,"a"')
    A(".p2align 6")
    A(f".amdhsa_kernel {KNAME}")
    A(f"  .amdhsa_next_free_vgpr {NVGPR}")
    A("  .amdhsa_next_free_sgpr 100")
    A(f"  .amdhsa_accum_offset {NVGPR}")
    A("  .amdhsa_group_segment_fixed_size 0")
    A("  .amdhsa_kernarg_size 64")
    A("  .amdhsa_user_sgpr_count 2")
    A("  .amdhsa_user_sgpr_kernarg_segment_ptr 1")
    A("  .amdhsa_system_sgpr_workgroup_id_x 1")
    A(".end_amdhsa_kernel")
    open(name, "w").write("\n".join(out) + "\n")

if __name__ == "__main__":
    names = []
    for spec in sys.argv[1:]:
        kw = {}
        nm = "k"
        for kv in spec.split(","):
            if not kv: continue
            k, val = kv.split("=")
            kw[k] = int(val)
            nm += f"_{k}{val}"
        nm += ".s"
        gen(nm, **kw)
        names.append(nm)
    print(" ".join(names))
    print(json.dumps(["work/bench.py", "cdna_kernels/cdna_launch.py", "cdna_kernels/cdna_unwritten_srd_check.py", "standalone__gqa_block_cached__sampling_np.py"] + ["work/" + n for n in names]))
```

```python
import sys, json, struct, math

KNAME = "standalone__gqa_block_cached__sampling_kernel"

def f2u(x):
    return struct.unpack("<I", struct.pack("<f", x))[0]

def gen(name, R=4, C=1, NS=4, nB=10, tk=1, pre=1, gran=4, bar0=1, stamps=0, spin=1 << 16, hsleep=4, prio=3, CP=3, late=1, tsleep=1, LZ=96, rnds=1):
    nA = 16
    assert R + NS < nA and R >= 3 and C < R and CP <= R

    assert nB >= C + 2 and nB <= 16
    assert tk == 1
    NT = (16 - nB) * 32 // tk
    PIECE, UNIT = 1056, 8448
    RING = R * UNIT
    L_X = 4 * RING
    L_Q = L_X + 14336
    L_O = L_Q + 2048
    L_CNT = L_O + 256
    L_P = L_CNT + 64
    PREC = 2080
    LDS = L_P + 4 * PREC
    assert LDS <= 163840, LDS
    WS_Q, WS_CNT, WS_ML, WS_PO, WS_FIN, WS_DBG, WS_SIZE = 0x280000, 0x10000, 0x20000, 0x40000, 0x140000, 0x300000, 0x400000
    C1 = math.log2(math.e) / 16.0
    NEGBIG = f2u(-3.0e38)

    out = []
    A = out.append
    lab = [0]
    def newl(p):
        lab[0] += 1
        return f"L_{p}_{lab[0]}"

    S = dict(
        SRD=8, WS=12, W2=16, DBG=20, XO=24,
        wave=28, grp=29, j=30, hkv=31, bp=32, bhA=33,
        off=34, rem=35, stride=36, half=37, rstart=38, rn=39, phase=40, seg=41,
        lslot=42, rbase=43, rend=44, cslot=45, skip=46, ldone=47, grant=48, done=49,
        tslot=50, inval=51, pend=52, startB=53, pool=54, cnt=55, n=56, u=57,
        t0=58, t1=59, t2=60, t3=61, c1=62, cseg=63,
        st0=80, st1=82, st2=84, st3=86, st4=88, st5=90, msk=92, spin=94, t4=95, nl=96, nh=97,
    )
    s = lambda n: f"s{S[n]}"
    sq = lambda n: f"s[{S[n]}:{S[n]+3}]"
    sp = lambda n: f"s[{S[n]}:{S[n]+1}]"
    KA = dict(x=64, K=66, V=68, wq=70, wo=72, out=74, dbg=76, ws=78)

    V = dict(lane=1, dma=2, krd=3, vrd=4, sad=5, ta=6, tb=7, tick=8, zero=9, m=10, mc=11, l=12, smax=13,
             t0=14, t1=15, t2=16, t3=17, t4=18, t5=19, acc=20, p=24, s4=28, c=26, g=27,
             q=32, kf=64, o=96, x=160)
    v = lambda n, i=0: f"v{V[n]+i}"
    vr = lambda n, i, k: f"v[{V[n]+i}:{V[n]+i+k-1}]"
    NVGPR = 192

    if stamps: A(f"; stamps5=1")
    A(f"; @launch grid=(256,1,1) block=(320,1,1) lds={LDS}")
    A('.amdgcn_target "amdgcn-amd-amdhsa--gfx950"')
    A(".text")
    A(f".globl {KNAME}")
    A(".p2align 8")
    A(f".type {KNAME},@function")
    A(f"{KNAME}:")
    A("s_cmp_ge_u32 s2, 256")
    A("s_cbranch_scc1 L_end")
    if stamps: A(f"s_memrealtime {sp('st0')}")
    A("s_load_dwordx16 s[64:79], s[0:1], 0")
    A("v_lshrrev_b32 v2, 6, v0")
    A(f"v_and_b32 {v('lane')}, 63, v0")
    A("s_nop 0")
    A(f"v_readfirstlane_b32 {s('wave')}, v2")
    A(f"s_lshr_b32 {s('grp')}, s2, 3")
    A(f"s_and_b32 {s('j')}, s2, 7")
    A(f"s_lshr_b32 {s('hkv')}, {s('grp')}, 2")
    A(f"s_and_b32 {s('bp')}, {s('grp')}, 3")
    A(f"s_lshl_b32 {s('bhA')}, {s('bp')}, 3")
    A(f"s_add_u32 {s('bhA')}, {s('bhA')}, {s('hkv')}")
    A(f"s_mov_b32 {s('msk')}, 0x00030003")
    A(f"s_mov_b32 s{S['msk']+1}, 0x00030003")
    A(f"v_lshlrev_b32 {v('dma')}, 4, {v('lane')}")
    A(f"v_and_b32 {v('c')}, 15, {v('lane')}")
    A(f"v_lshrrev_b32 {v('g')}, 4, {v('lane')}")
    A(f"v_mov_b32 {v('zero')}, 0")
    A("s_waitcnt lgkmcnt(0)")
    def srd(n, ptr, size):
        A(f"s_mov_b32 s{S[n]}, s{KA[ptr]}")
        A(f"s_and_b32 s{S[n]+1}, s{KA[ptr]+1}, 0xffff")
        A(f"s_mov_b32 s{S[n]+2}, {size}")
        A(f"s_mov_b32 s{S[n]+3}, 0x00020000")
    srd("WS", "ws", WS_SIZE)
    A(f"s_and_b32 s{KA['K']+1}, s{KA['K']+1}, 0xffff")
    A(f"s_and_b32 s{KA['V']+1}, s{KA['V']+1}, 0xffff")
    A(f"s_cmp_eq_u32 {s('wave')}, 4")
    A("s_cbranch_scc1 L_helper")

    srd("SRD", "K", 256 << 20)
    srd("W2", "wo", 4096 * 896)
    A(f"s_lshl_b32 {s('t0')}, {s('bhA')}, 22")
    A(f"s_mul_i32 {s('t1')}, {s('j')}, {nA*64*512}")
    A(f"s_mul_i32 {s('t2')}, {s('wave')}, {gran*1024}")
    A(f"s_add_u32 {s('off')}, {s('t0')}, {s('t1')}")
    A(f"s_add_u32 {s('off')}, {s('off')}, {s('t2')}")
    A(f"s_mov_b32 {s('rstart')}, {s('off')}")
    A(f"s_add_u32 {s('t0')}, {s('t0')}, {32 << 22}")
    A(f"s_mul_i32 {s('t1')}, {s('j')}, {nB*64*512}")
    A(f"s_add_u32 {s('startB')}, {s('t0')}, {s('t1')}")
    A(f"s_add_u32 {s('startB')}, {s('startB')}, {s('t2')}")
    A(f"s_add_u32 {s('pool')}, {s('t0')}, {8*nB*64*512}")
    A(f"s_mov_b32 {s('rem')}, {nA}")
    A(f"s_mov_b32 {s('rn')}, {nA}")
    A(f"s_mov_b32 {s('stride')}, {4*8192}")
    A(f"s_mov_b32 {s('half')}, {4*4096 if gran == 4 else 4096}")
    A(f"s_mov_b32 {s('phase')}, 0")
    A(f"s_mov_b32 {s('seg')}, 0")
    A(f"s_mul_i32 {s('rbase')}, {s('wave')}, {RING}")
    A(f"s_mov_b32 {s('lslot')}, {s('rbase')}")
    A(f"s_mov_b32 {s('cslot')}, {s('rbase')}")
    A(f"s_add_u32 {s('rend')}, {s('rbase')}, {RING}")
    A(f"s_mov_b32 {s('ldone')}, 0")
    A(f"s_mov_b32 {s('grant')}, 0")
    A(f"s_mov_b32 {s('done')}, 0")
    A(f"s_mov_b32 {s('tslot')}, 0")
    A(f"s_mov_b32 {s('inval')}, 0")
    A(f"s_mov_b32 {s('pend')}, 0")
    A(f"s_lshl_b32 {s('cnt')}, {s('grp')}, 8")
    A(f"s_add_u32 {s('cnt')}, {s('cnt')}, {WS_CNT}")
    A(f"s_mov_b32 {s('c1')}, {hex(f2u(C1))}")
    A(f"v_mov_b32 {v('tick')}, 1")
    if bar0: A("s_barrier")

    def issue_raw(static_only=False):
        t = newl("is")
        A(f"s_add_u32 {s('t0')}, {s('off')}, {s('half')}")
        for i in range(8):
            imm = (i % 4) * 1024
            A(f"s_add_u32 m0, {s('lslot')}, {i*PIECE - imm}")
            A("s_nop 0")
            so = s('off') if i < 4 else s('t0')
            A(f"buffer_load_dwordx4 {v('dma')}, {sq('SRD')}, {so} offen offset:{imm} nt lds")
        A(f"s_add_u32 {s('lslot')}, {s('lslot')}, {UNIT}")
        A(f"s_cmp_eq_u32 {s('lslot')}, {s('rend')}")
        A(f"s_cselect_b32 {s('lslot')}, {s('rbase')}, {s('lslot')}")
        A(f"s_add_u32 {s('off')}, {s('off')}, {s('stride')}")
        A(f"s_sub_u32 {s('rem')}, {s('rem')}, 1")
        if static_only:
            return
        A(f"s_cmp_lg_u32 {s('rem')}, 0")
        A(f"s_cbranch_scc1 {t}_done")
        A(f"s_cmp_eq_u32 {s('phase')}, 0")
        A(f"s_cbranch_scc0 {t}_nseg")
        A(f"s_mov_b32 s{S['SRD']}, s{KA['V']}")
        A(f"s_mov_b32 s{S['SRD']+1}, s{KA['V']+1}")
        A(f"s_mov_b32 {s('off')}, {s('rstart')}")
        A(f"s_mov_b32 {s('rem')}, {s('rn')}")
        A(f"s_mov_b32 {s('phase')}, 1")
        A(f"s_branch {t}_done")
        A(f"{t}_nseg:")
        A(f"s_mov_b32 s{S['SRD']}, s{KA['K']}")
        A(f"s_mov_b32 s{S['SRD']+1}, s{KA['K']+1}")
        A(f"s_mov_b32 {s('phase')}, 0")
        A(f"s_add_u32 {s('seg')}, {s('seg')}, 1")
        A(f"s_cmp_eq_u32 {s('seg')}, 1")
        A(f"s_cbranch_scc0 {t}_dyn")
        A(f"s_mov_b32 {s('off')}, {s('startB')}")
        A(f"s_mov_b32 {s('rstart')}, {s('startB')}")
        A(f"s_mov_b32 {s('rem')}, {nB}")
        A(f"s_mov_b32 {s('rn')}, {nB}")
        A(f"s_branch {t}_done")
        A(f"{t}_dyn:")
        A(f"s_mov_b32 {s('t4')}, 0")
        A(f"v_mov_b32 {v('t4')}, {L_CNT + 8}")
        A(f"{t}_okp:")
        A(f"ds_read_b32 {v('t5')}, {v('t4')}")
        A("s_waitcnt lgkmcnt(0)")
        A(f"v_readfirstlane_b32 {s('t1')}, {v('t5')}")
        A(f"s_add_u32 {s('t4')}, {s('t4')}, 1")
        A(f"s_cmp_eq_u32 {s('t1')}, 1")
        A(f"s_cbranch_scc1 {t}_req")
        A("s_sleep 4")
        A(f"s_cmp_lt_u32 {s('t4')}, {spin*4}")
        A(f"s_cbranch_scc1 {t}_okp")
        A(f"{t}_req:")
        A(f"v_mov_b32 {v('tick')}, 1")
        A("s_mov_b64 exec, 1")
        A(f"buffer_atomic_add {v('tick')}, {v('zero')}, {sq('WS')}, {s('cnt')} offen sc0 sc1")
        A("s_mov_b64 exec, -1")
        A(f"s_mov_b32 {s('ldone')}, 1")
        A(f"{t}_done:")

    def wait_issue():
        t = newl("wi")
        A(f"s_cmp_eq_u32 {s('ldone')}, 0")
        A(f"s_cbranch_scc1 {t}_a")
        A("s_waitcnt vmcnt(0)")
        A(f"s_branch {t}_e")
        A(f"{t}_a:")
        A(f"s_waitcnt vmcnt({8*(C-1)})")
        A(f"s_cmp_eq_u32 {s('skip')}, 0")
        A(f"s_cbranch_scc1 {t}_b")
        A(f"s_sub_u32 {s('skip')}, {s('skip')}, 1")
        A(f"s_branch {t}_e")
        A(f"{t}_b:")
        issue_raw()
        A(f"{t}_e:")

    def adv_cslot():
        A(f"s_add_u32 {s('cslot')}, {s('cslot')}, {UNIT}")
        A(f"s_cmp_eq_u32 {s('cslot')}, {s('rend')}")
        A(f"s_cselect_b32 {s('cslot')}, {s('rbase')}, {s('cslot')}")

    for u in range(CP):
        issue_raw(True)
    A(f"v_and_b32 {v('t0')}, 7, {v('c')}")
    A(f"v_mul_u32_u24 {v('krd')}, {PIECE}, {v('t0')}")
    A(f"v_lshrrev_b32 {v('t0')}, 3, {v('c')}")
    A(f"v_lshl_add_u32 {v('krd')}, {v('t0')}, 9, {v('krd')}")
    A(f"v_lshl_add_u32 {v('krd')}, {v('g')}, 4, {v('krd')}")
    A(f"v_lshrrev_b32 {v('t0')}, 2, {v('lane')}")
    A(f"v_and_b32 {v('t0')}, 7, {v('t0')}")
    A(f"v_mul_u32_u24 {v('vrd')}, {PIECE}, {v('t0')}")
    A(f"v_lshrrev_b32 {v('t0')}, 5, {v('lane')}")
    A(f"v_lshl_add_u32 {v('vrd')}, {v('t0')}, 9, {v('vrd')}")
    A(f"v_and_b32 {v('t0')}, 3, {v('lane')}")
    A(f"v_lshl_add_u32 {v('vrd')}, {v('t0')}, 3, {v('vrd')}")
    A(f"v_and_b32 {v('t0')}, 1, {v('c')}")
    A(f"v_lshlrev_b32 {v('sad')}, 10, {v('t0')}")
    A(f"v_lshl_add_u32 {v('sad')}, {v('g')}, 4, {v('sad')}")
    A(f"s_lshl_b32 {s('t3')}, {s('wave')}, 11")
    A(f"s_add_u32 {s('t3')}, {s('t3')}, {L_X}")
    A(f"v_add_u32 {v('sad')}, {s('t3')}, {v('sad')}")
    for u in range(CP, R):
        A(f"s_waitcnt vmcnt({8*(CP-1)})")
        issue_raw(True)
    stage = [V['kf'], V['o'], V['o'] + 32, V['x']][:NS]
    for k in range(NS):
        A(f"s_waitcnt vmcnt({8*(CP-1)})")
        A(f"v_add_u32 {v('ta')}, {s('cslot')}, {v('krd')}")
        for jj in range(8):
            A(f"ds_read_b128 v[{stage[k]+4*jj}:{stage[k]+4*jj+3}], {v('ta')} offset:{jj*64}")
        adv_cslot()
        A("s_waitcnt lgkmcnt(0)")
        issue_raw(True)
    A(f"s_mov_b32 {s('skip')}, {R-C}")
    if stamps: A(f"s_memrealtime {sp('st1')}")
    A("s_barrier")
    if stamps: A(f"s_memrealtime {sp('st2')}")

    def load_q(seg):
        A(f"v_and_b32 {v('t0')}, 1, {v('c')}")
        A(f"v_lshlrev_b32 {v('t0')}, 9, {v('t0')}")
        A(f"v_lshl_add_u32 {v('t0')}, {v('g')}, 4, {v('t0')}")
        A(f"v_add_u32 {v('t0')}, {L_Q + seg*1024}, {v('t0')}")
        for jj in range(8):
            A(f"ds_read_b128 {vr('q', 4*jj, 4)}, {v('t0')} offset:{jj*64}")
        A("s_waitcnt lgkmcnt(0)")

    def qk(base):
        for jj in range(8):
            cc = "0" if jj == 0 else vr('acc', 0, 4)
            A(f"v_mfma_f32_16x16x32_bf16 {vr('acc',0,4)}, v[{base+4*jj}:{base+4*jj+3}], {vr('q',4*jj,4)}, {cc}")

    def s_store(addr_v, off):
        A("s_nop 7")
        A("s_nop 1")
        if rnds:
            A(f"v_cvt_pk_bf16_f32 {v('t0')}, {v('acc',0)}, {v('acc',1)}")
            A(f"v_cvt_pk_bf16_f32 {v('t1')}, {v('acc',2)}, {v('acc',3)}")
            A(f"v_lshlrev_b32 {v('acc',0)}, 16, {v('t0')}")
            A(f"v_and_b32 {v('acc',1)}, 0xffff0000, {v('t0')}")
            A(f"v_lshlrev_b32 {v('acc',2)}, 16, {v('t1')}")
            A(f"v_and_b32 {v('acc',3)}, 0xffff0000, {v('t1')}")
        A(f"v_max3_f32 {v('smax')}, {v('acc',0)}, {v('acc',1)}, {v('smax')}")
        A(f"v_max3_f32 {v('smax')}, {v('acc',2)}, {v('acc',3)}, {v('smax')}")
        A(f"s_mov_b64 exec, {sp('msk')}")
        A(f"ds_write_b128 {addr_v}, {vr('acc',0,4)} offset:{off}")
        A("s_mov_b64 exec, -1")

    def init_state():
        for i in range(64):
            A(f"v_mov_b32 {v('o', i)}, 0")
        A(f"v_mov_b32 {v('m')}, {hex(NEGBIG)}")
        A(f"v_mov_b32 {v('l')}, 0")

    def xrow(op, reg, tmp):
        for sw in ("v_permlane16_swap_b32", "v_permlane32_swap_b32"):
            A(f"v_mov_b32 {tmp}, {reg}")
            A("s_nop 1")
            A(f"{sw} {reg}, {tmp}")
            A("s_nop 1")
            A(f"{op} {reg}, {reg}, {tmp}")

    def k_unit():
        A(f"v_add_u32 {v('ta')}, {s('cslot')}, {v('krd')}")
        for jj in range(8):
            A(f"ds_read_b128 {vr('kf',4*jj,4)}, {v('ta')} offset:{jj*64}")
        adv_cslot()
        A(f"s_lshl_b32 {s('t3')}, {s('u')}, 6")
        A(f"v_add_u32 {v('tb')}, {s('t3')}, {v('sad')}")
        for jj in range(8):
            A(f"s_waitcnt lgkmcnt({7-jj})")
            cc = "0" if jj == 0 else vr('acc', 0, 4)
            A(f"v_mfma_f32_16x16x32_bf16 {vr('acc',0,4)}, {vr('kf',4*jj,4)}, {vr('q',4*jj,4)}, {cc}")
        s_store(v('tb'), 0)

    def softmax_update():
        xrow("v_max_f32", v('smax'), v('t0'))
        A(f"v_max_f32 {v('smax')}, {v('smax')}, {v('m')}")
        A(f"v_sub_f32 {v('t0')}, {v('m')}, {v('smax')}")
        A(f"v_mul_f32 {v('t0')}, {s('c1')}, {v('t0')}")
        A(f"v_exp_f32 {v('t0')}, {v('t0')}")
        A(f"v_mov_b32 {v('m')}, {v('smax')}")
        A(f"v_mul_f32 {v('mc')}, {s('c1')}, {v('smax')}")
        A(f"v_mul_f32 {v('l')}, {v('l')}, {v('t0')}")
        for i in range(64):
            A(f"v_mul_f32 {v('o', i)}, {v('o', i)}, {v('t0')}")

    def v_unit():
        A(f"s_lshl_b32 {s('t3')}, {s('u')}, 6")
        A(f"v_add_u32 {v('tb')}, {s('t3')}, {v('sad')}")
        A(f"v_add_u32 {v('ta')}, {s('cslot')}, {v('vrd')}")
        A(f"ds_read_b128 {vr('s4',0,4)}, {v('tb')}")
        for dt in range(16):
            A(f"ds_read_b64_tr_b16 {vr('kf',2*dt,2)}, {v('ta')} offset:{dt*32}")
        adv_cslot()
        A("s_waitcnt lgkmcnt(15)")
        for i in range(4):
            A(f"v_fma_f32 {v('s4',i)}, {v('s4',i)}, {s('c1')}, -{v('mc')}")
        for i in range(4):
            A(f"v_exp_f32 {v('s4',i)}, {v('s4',i)}")
        A("s_nop 0")
        A(f"v_cvt_pk_bf16_f32 {v('p',0)}, {v('s4',0)}, {v('s4',1)}")
        A(f"v_cvt_pk_bf16_f32 {v('p',1)}, {v('s4',2)}, {v('s4',3)}")
        A(f"v_lshlrev_b32 {v('t0')}, 16, {v('p',0)}")
        A(f"v_and_b32 {v('t1')}, 0xffff0000, {v('p',0)}")
        A(f"v_lshlrev_b32 {v('t2')}, 16, {v('p',1)}")
        A(f"v_and_b32 {v('t3')}, 0xffff0000, {v('p',1)}")
        A(f"v_add_f32 {v('t0')}, {v('t0')}, {v('t1')}")
        A(f"v_add_f32 {v('t2')}, {v('t2')}, {v('t3')}")
        A(f"v_add_f32 {v('t0')}, {v('t0')}, {v('t2')}")
        A(f"v_add_f32 {v('l')}, {v('l')}, {v('t0')}")
        for dt in range(16):
            A(f"s_waitcnt lgkmcnt({15-dt})")
            A(f"v_mfma_f32_16x16x16_bf16 {vr('o',4*dt,4)}, {vr('kf',2*dt,2)}, {vr('p',0,2)}, {vr('o',4*dt,4)}")

    load_q(0)
    A(f"v_mov_b32 {v('smax')}, {hex(NEGBIG)}")
    for k in range(NS):
        qk(stage[k])
        s_store(v('sad'), k * 64)
        A("s_nop 3")
    init_state()
    A(f"s_mov_b32 {s('n')}, {nA}")
    A(f"s_mov_b32 {s('u')}, {NS}")
    A(f"s_mov_b32 {s('cseg')}, 0")
    A("s_branch L_kloop")

    A("L_seg:")
    A(f"v_mov_b32 {v('smax')}, {hex(NEGBIG)}")
    A(f"s_mov_b32 {s('u')}, 0")
    A("L_kloop:")
    wait_issue()
    k_unit()
    A(f"s_add_u32 {s('u')}, {s('u')}, 1")
    A(f"s_cmp_lt_u32 {s('u')}, {s('n')}")
    A("s_cbranch_scc1 L_kloop")
    softmax_update()
    A(f"s_mov_b32 {s('u')}, 0")
    A("L_vloop:")
    wait_issue()
    v_unit()
    A(f"s_add_u32 {s('u')}, {s('u')}, 1")
    A(f"s_cmp_lt_u32 {s('u')}, {s('n')}")
    A("s_cbranch_scc1 L_vloop")

    def write_partial(base_s, cnt_off):
        A("s_nop 15")
        A(f"v_mov_b32 {v('t1')}, {v('l')}")
        xrow("v_add_f32", v('t1'), v('t0'))
        A(f"v_mov_b32 {v('t0')}, {v('mc')}")
        A(f"v_lshlrev_b32 {v('ta')}, 10, {v('c')}")
        A(f"v_lshl_add_u32 {v('ta')}, {v('g')}, 4, {v('ta')}")
        A(f"v_add_u32 {v('ta')}, {base_s}, {v('ta')}")
        A(f"v_lshlrev_b32 {v('tb')}, 3, {v('c')}")
        A(f"v_add_u32 {v('tb')}, {base_s}, {v('tb')}")
        A(f"s_mov_b64 exec, {sp('msk')}")
        for dt in range(16):
            A(f"ds_write_b128 {v('ta')}, {vr('o',4*dt,4)} offset:{dt*64}")
        A("s_mov_b64 exec, 3")
        A(f"ds_write_b64 {v('tb')}, {vr('t0',0,2)} offset:2048")
        A("s_mov_b64 exec, 1")
        A(f"v_mov_b32 {v('t2')}, 1")
        A(f"v_mov_b32 {v('t3')}, {L_CNT + cnt_off}")
        A("s_waitcnt lgkmcnt(0)")
        A(f"ds_add_u32 {v('t3')}, {v('t2')}")
        A("s_mov_b64 exec, -1")

    A(f"s_cmp_eq_u32 {s('cseg')}, 0")
    A("s_cbranch_scc0 L_segB")
    A(f"s_mul_i32 {s('t3')}, {s('wave')}, {PREC}")
    A(f"s_add_u32 {s('t3')}, {s('t3')}, {L_P}")
    write_partial(s('t3'), 0)
    init_state()
    load_q(1)
    A(f"s_mov_b32 {s('cseg')}, 1")
    A(f"s_mov_b32 {s('n')}, {nB}")
    A("s_branch L_seg")
    A("L_segB:")
    A(f"s_mov_b32 {s('u')}, 0")
    A(f"s_mov_b32 {s('half')}, 4096")
    def req():
        A(f"v_mov_b32 {v('tick')}, 1")
        A("s_mov_b64 exec, 1")
        A(f"buffer_atomic_add {v('tick')}, {v('zero')}, {sq('WS')}, {s('cnt')} offen sc0 sc1")
        A("s_mov_b64 exec, -1")
    def issue_ticket():
        A(f"s_mov_b32 {s('tslot')}, {s('t1')}")
        A(f"s_lshl_b32 {s('rstart')}, {s('t1')}, 13")
        A(f"s_add_u32 {s('rstart')}, {s('rstart')}, {s('pool')}")
        A(f"s_mov_b32 {s('off')}, {s('rstart')}")
        A(f"s_mov_b32 s{S['SRD']}, s{KA['K']}")
        A(f"s_mov_b32 s{S['SRD']+1}, s{KA['K']+1}")
        issue_raw(True)
        A(f"s_mov_b32 {s('off')}, {s('rstart')}")
        A(f"s_mov_b32 s{S['SRD']}, s{KA['V']}")
        A(f"s_mov_b32 s{S['SRD']+1}, s{KA['V']+1}")
        issue_raw(True)
        A(f"s_add_u32 {s('done')}, {s('done')}, 1")
    A("s_waitcnt vmcnt(0)")
    A(f"v_readfirstlane_b32 {s('t1')}, {v('tick')}")
    A("s_nop 0")
    A(f"s_cmp_lt_u32 {s('t1')}, {NT}")
    A("s_cbranch_scc0 L_sdone")
    issue_ticket()
    A("L_dyn:")
    A(f"v_mov_b32 {v('smax')}, {hex(NEGBIG)}")
    A("s_waitcnt vmcnt(8)")
    A(f"s_cmp_lt_u32 {s('tslot')}, {max(NT - LZ, 0)}")
    A("s_cbranch_scc0 L_lazy")
    req()
    k_unit()
    softmax_update()
    A("s_waitcnt vmcnt(0)")
    A(f"v_readfirstlane_b32 {s('t1')}, {v('tick')}")
    A(f"s_mov_b32 {s('pend')}, 0")
    A(f"s_cmp_lt_u32 {s('t1')}, {NT}")
    A("s_cbranch_scc0 L_dyn_last")
    issue_ticket()
    A(f"s_mov_b32 {s('pend')}, 1")
    A("L_dyn_last:")
    v_unit()
    A(f"s_cmp_eq_u32 {s('pend')}, 1")
    A("s_cbranch_scc1 L_dyn")
    A("s_branch L_sdone")
    A("L_lazy:")
    k_unit()
    softmax_update()
    A("s_waitcnt vmcnt(0)")
    req()
    v_unit()
    A("s_waitcnt vmcnt(0)")
    A(f"v_readfirstlane_b32 {s('t1')}, {v('tick')}")
    A("s_nop 0")
    A(f"s_cmp_lt_u32 {s('t1')}, {NT}")
    A("s_cbranch_scc0 L_sdone")
    issue_ticket()
    A("s_branch L_dyn")
    A("L_sdone:")
    if stamps: A(f"s_memrealtime {sp('st3')}")
    A(f"s_add_u32 {s('t3')}, {s('rbase')}, {2*UNIT}")
    write_partial(s('t3'), 4)
    A(f"v_mul_u32_u24 {v('t4')}, 896, {v('g')}")
    A(f"v_lshl_add_u32 {v('t4')}, {v('c')}, 4, {v('t4')}")
    A(f"s_lshl_b32 {s('t0')}, {s('hkv')}, 3")
    A(f"s_add_u32 {s('t0')}, {s('t0')}, {s('j')}")
    A(f"s_mul_i32 {s('t1')}, {s('t0')}, {64*896}")
    A(f"s_mul_i32 {s('t2')}, {s('wave')}, 224")
    A(f"s_add_u32 {s('t1')}, {s('t1')}, {s('t2')}")
    for i in range(16):
        A(f"s_add_u32 m0, {s('rbase')}, {i*PIECE}")
        A(f"s_add_u32 {s('t2')}, {s('t1')}, {i*3584}")
        A(f"buffer_load_dwordx4 {v('t4')}, {sq('W2')}, {s('t2')} offen lds")
    A(f"v_mul_u32_u24 {v('ta')}, {2*PIECE}, {v('g')}")
    A(f"v_lshrrev_b32 {v('t0')}, 2, {v('c')}")
    A(f"v_lshl_add_u32 {v('ta')}, {v('t0')}, 8, {v('ta')}")
    A(f"v_and_b32 {v('t0')}, 3, {v('c')}")
    A(f"v_lshl_add_u32 {v('ta')}, {v('t0')}, 3, {v('ta')}")
    A(f"v_add_u32 {v('ta')}, {s('rbase')}, {v('ta')}")
    A(f"v_and_b32 {v('t0')}, 1, {v('c')}")
    A(f"v_lshlrev_b32 {v('tb')}, 7, {v('t0')}")
    A(f"v_lshl_add_u32 {v('tb')}, {v('g')}, 4, {v('tb')}")
    A(f"v_add_u32 {v('tb')}, {L_O}, {v('tb')}")
    A(f"v_lshlrev_b32 {v('t5')}, 19, {v('c')}")
    A(f"v_lshl_add_u32 {v('t5')}, {v('g')}, 4, {v('t5')}")
    A(f"s_lshl_b32 {s('t1')}, {s('bp')}, 5")
    A(f"s_mul_i32 {s('t2')}, {s('wave')}, 7")
    A(f"s_add_u32 {s('t1')}, {s('t1')}, {s('t2')}")
    A(f"s_lshl_b32 {s('t1')}, {s('t1')}, 6")
    A(f"s_add_u32 {s('t1')}, {s('t1')}, {s('t0')}")
    A(f"s_lshl_b32 {s('t1')}, {s('t1')}, 6")
    A(f"s_add_u32 {s('t1')}, {s('t1')}, {WS_FIN}")
    A("s_waitcnt vmcnt(0)")
    for nt in range(7):
        for ks in range(2):
            for h in range(2):
                r = V['o'] + (nt * 2 + ks) * 4 + h * 2
                A(f"ds_read_b64_tr_b16 v[{r}:{r+1}], {v('ta')} offset:{ks*UNIT + h*PIECE + nt*32}")
    A("s_waitcnt lgkmcnt(0)")
    A("s_barrier")
    A(f"ds_read_b128 {vr('q',0,4)}, {v('tb')}")
    A(f"ds_read_b128 {vr('q',4,4)}, {v('tb')} offset:64")
    A("s_waitcnt lgkmcnt(0)")
    for nt in range(7):
        for ks in range(2):
            r = V['o'] + (nt * 2 + ks) * 4
            cc = "0" if ks == 0 else vr('kf', 4 * nt, 4)
            A(f"v_mfma_f32_16x16x32_bf16 {vr('kf',4*nt,4)}, v[{r}:{r+3}], {vr('q',4*ks,4)}, {cc}")
    A("s_nop 7")
    A("s_nop 3")
    for i in range(28):
        A(f"v_min_u32 {v('kf',i)}, 0xfffffffe, {v('kf',i)}")
    A(f"s_mov_b64 exec, {sp('msk')}")
    for nt in range(7):
        A(f"s_add_u32 {s('t2')}, {s('t1')}, {nt*4096}")
        A(f"buffer_store_dwordx4 {vr('kf',4*nt,4)}, {v('t5')}, {sq('WS')}, {s('t2')} offen sc1")
    A("s_mov_b64 exec, -1")
    if stamps:
        A(f"s_memrealtime {sp('st4')}")
        A("s_branch L_stamps")
    A("s_endpgm")

    A("L_helper:")
    if prio: A(f"s_setprio {prio}")
    srd("W2", "wq", 448 * 8192)
    srd("DBG", "dbg", 256)
    srd("XO", "x", 8 * 896)
    H = dict(xf=32, wf=96, acc=100, a=104, b=105, c=106, d=107, e=108, f=109, sent=112, ml=116, po=120, w=152, t=160)
    h = lambda n, i=0: f"v{H[n]+i}"
    hr = lambda n, i, k: f"v[{H[n]+i}:{H[n]+i+k-1}]"
    A("s_cmp_lg_u32 s2, 0")
    A("s_cbranch_scc1 L_h_nowr")
    A(f"s_memrealtime s[{S['nl']}:{S['nh']}]")
    A("s_waitcnt lgkmcnt(0)")
    A(f"s_or_b32 {s('nl')}, {s('nl')}, 1")
    A(f"v_mov_b32 {h('sent',0)}, {s('nl')}")
    A(f"v_mov_b32 {h('sent',1)}, {s('nh')}")
    A(f"v_mov_b32 {h('sent',2)}, 0")
    A(f"v_mov_b32 {h('sent',3)}, 0")
    A("s_mov_b64 exec, 1")
    A(f"buffer_atomic_cmpswap_x2 {hr('sent',0,4)}, {v('zero')}, {sq('DBG')}, 0 offen sc1")
    A("s_mov_b64 exec, -1")
    A("L_h_nowr:")
    A(f"s_lshl_b32 {s('t0')}, {s('hkv')}, 5")
    A(f"s_lshl_b32 {s('t1')}, {s('j')}, 2")
    A(f"s_add_u32 {s('t0')}, {s('t0')}, {s('t1')}")
    A(f"s_add_u32 {s('t0')}, {s('t0')}, {s('bp')}")
    A(f"s_lshl_b32 {s('off')}, {s('t0')}, 5")
    A(f"v_lshrrev_b32 {h('a')}, 1, {v('lane')}")
    A(f"v_lshlrev_b32 {h('a')}, 13, {h('a')}")
    A(f"v_and_b32 {h('b')}, 1, {v('lane')}")
    A(f"v_lshl_add_u32 {h('a')}, {h('b')}, 4, {h('a')}")
    for i in range(14):
        A(f"s_mov_b32 m0, {L_X + i*1024}")
        A(f"s_add_u32 {s('t1')}, {s('off')}, {i*32*8192}")
        A(f"buffer_load_dwordx4 {h('a')}, {sq('W2')}, {s('t1')} offen lds")
    A(f"v_and_b32 {h('b')}, 7, {v('c')}")
    A(f"v_mul_u32_u24 {h('b')}, 896, {h('b')}")
    A(f"v_lshl_add_u32 {h('b')}, {v('g')}, 4, {h('b')}")
    for ks in range(14):
        A(f"buffer_load_dwordx4 {hr('xf',4*ks,4)}, {h('b')}, {sq('XO')}, 0 offen offset:{ks*64}")
    if bar0: A("s_barrier")
    for i in range(4):
        A(f"v_mov_b32 {h('sent',i)}, -1")
    A(f"s_lshl_b32 {s('t0')}, {s('bhA')}, 3")
    A(f"s_add_u32 {s('t0')}, {s('t0')}, {s('j')}")
    A(f"s_lshl_b32 {s('rstart')}, {s('t0')}, 11")
    A(f"s_add_u32 {s('rstart')}, {s('rstart')}, {WS_PO}")
    A(f"s_add_u32 {s('rn')}, {s('rstart')}, {256*2048}")
    A(f"s_lshl_b32 {s('stride')}, {s('t0')}, 6")
    A(f"s_add_u32 {s('stride')}, {s('stride')}, {WS_ML}")
    A(f"s_add_u32 {s('half')}, {s('stride')}, {256*64}")
    A(f"s_lshl_b32 {s('pool')}, s2, 12")
    A(f"s_add_u32 {s('pool')}, {s('pool')}, {WS_FIN}")
    for base in ('rstart', 'rn'):
        for t in range(2):
            A(f"buffer_store_dwordx4 {hr('sent',0,4)}, {v('dma')}, {sq('WS')}, {s(base)} offen offset:{t*1024} sc1")
    for t in range(4):
        A(f"buffer_store_dwordx4 {hr('sent',0,4)}, {v('dma')}, {sq('WS')}, {s('pool')} offen offset:{t*1024} sc1")
    A("s_mov_b64 exec, 15")
    A(f"buffer_store_dwordx4 {hr('sent',0,4)}, {v('dma')}, {sq('WS')}, {s('stride')} offen sc1")
    A(f"buffer_store_dwordx4 {hr('sent',0,4)}, {v('dma')}, {sq('WS')}, {s('half')} offen sc1")
    A("s_mov_b64 exec, 1")
    A(f"s_cmp_eq_u32 {s('j')}, 0")
    A("s_cbranch_scc0 L_h_nocnt")
    A(f"s_lshl_b32 {s('t1')}, {s('grp')}, 8")
    A(f"s_add_u32 {s('t1')}, {s('t1')}, {WS_CNT}")
    A(f"buffer_store_dword {v('zero')}, {v('zero')}, {sq('WS')}, {s('t1')} offen sc1")
    A("L_h_nocnt:")
    A(f"v_mov_b32 {h('c')}, {L_CNT}")
    A(f"v_mov_b32 {h('e')}, 0")
    A(f"v_mov_b32 {h('f')}, 0")
    A(f"ds_write_b64 {h('c')}, {hr('e',0,2)}")
    A(f"ds_write_b64 {h('c')}, {hr('e',0,2)} offset:8")
    A("s_mov_b64 exec, -1")
    A(f"v_lshrrev_b32 {h('c')}, 2, {v('c')}")
    A(f"v_lshl_add_u32 {h('c')}, {v('g')}, 3, {h('c')}")
    A(f"v_lshlrev_b32 {h('c')}, 5, {h('c')}")
    A(f"v_and_b32 {h('d')}, 3, {v('c')}")
    A(f"v_lshl_add_u32 {h('c')}, {h('d')}, 3, {h('c')}")
    A(f"v_add_u32 {h('c')}, {L_X}, {h('c')}")
    A(f"v_lshlrev_b32 {h('d')}, 14, {v('c')}")
    A(f"v_lshl_add_u32 {h('d')}, {v('g')}, 4, {h('d')}")
    A(f"s_lshl_b32 {s('off')}, {s('off')}, 1")
    A(f"s_add_u32 {s('off')}, {s('off')}, {WS_Q}")
    A(f"buffer_load_dwordx2 {hr('ml',0,2)}, {v('zero')}, {sq('DBG')}, 0 offen sc1")
    A("s_waitcnt vmcnt(0)")
    if stamps: A(f"s_memrealtime {sp('st1')}")
    A("s_mov_b64 exec, 1")
    A(f"v_mov_b32 {h('e')}, 1")
    A(f"s_lshl_b32 {s('cnt')}, {s('hkv')}, 4")
    A(f"buffer_atomic_add {h('e')}, {v('zero')}, {sq('DBG')}, {s('cnt')} offen offset:128 sc1")
    A("s_mov_b64 exec, -1")
    for ks in range(14):
        r = H['po'] + (ks % 4) * 4
        A(f"ds_read_b64_tr_b16 v[{r}:{r+1}], {h('c')} offset:{ks*1024}")
        A(f"ds_read_b64_tr_b16 v[{r+2}:{r+3}], {h('c')} offset:{ks*1024 + 128}")
        A("s_waitcnt lgkmcnt(0)")
        cc = "0" if ks == 0 else hr('acc', 0, 4)
        A(f"v_mfma_f32_16x16x32_bf16 {hr('acc',0,4)}, v[{r}:{r+3}], {hr('xf',4*ks,4)}, {cc}")
    A(f"s_mov_b32 {s('spin')}, 0")
    A("L_h_nonce:")
    A(f"v_readfirstlane_b32 {s('nl')}, {h('ml',0)}")
    A(f"v_readfirstlane_b32 {s('nh')}, {h('ml',1)}")
    A(f"s_add_u32 {s('spin')}, {s('spin')}, 1")
    A(f"s_cmp_lg_u32 {s('nl')}, 0")
    A("s_cbranch_scc1 L_h_gotn")
    A(f"buffer_load_dwordx2 {hr('ml',0,2)}, {v('zero')}, {sq('DBG')}, 0 offen sc1")
    A("s_waitcnt vmcnt(0)")
    A(f"s_cmp_lt_u32 {s('spin')}, {spin}")
    A("s_cbranch_scc1 L_h_nonce")
    A("L_h_gotn:")
    A("s_nop 7")
    A(f"v_cvt_pk_bf16_f32 {h('sent',0)}, {h('acc',0)}, {h('acc',1)}")
    A(f"v_cvt_pk_bf16_f32 {h('sent',1)}, {h('acc',2)}, {h('acc',3)}")
    A(f"v_mov_b32 {h('sent',2)}, {s('nl')}")
    A(f"v_mov_b32 {h('sent',3)}, {s('nh')}")
    A("s_mov_b32 exec_lo, 0x00ff00ff")
    A("s_mov_b32 exec_hi, 0x00ff00ff")
    A(f"buffer_store_dwordx4 {hr('sent',0,4)}, {h('d')}, {sq('WS')}, {s('off')} offen sc1")
    A("s_mov_b64 exec, -1")
    A(f"s_lshl_b32 {s('t1')}, {s('bp')}, 14")
    A(f"s_lshl_b32 {s('t2')}, {s('hkv')}, 11")
    A(f"s_add_u32 {s('t1')}, {s('t1')}, {s('t2')}")
    A(f"s_add_u32 {s('t1')}, {s('t1')}, {WS_Q}")
    A(f"s_add_u32 {s('t2')}, {s('t1')}, {4*16384}")
    A(f"s_mov_b32 {s('spin')}, 0")
    A("L_h_pollq:")
    A(f"buffer_load_dwordx4 {hr('po',0,4)}, {v('dma')}, {sq('WS')}, {s('t1')} offen sc1")
    A(f"buffer_load_dwordx4 {hr('po',4,4)}, {v('dma')}, {sq('WS')}, {s('t1')} offen offset:1024 sc1")
    A(f"buffer_load_dwordx4 {hr('po',8,4)}, {v('dma')}, {sq('WS')}, {s('t2')} offen sc1")
    A(f"buffer_load_dwordx4 {hr('po',12,4)}, {v('dma')}, {sq('WS')}, {s('t2')} offen offset:1024 sc1")
    A("s_waitcnt vmcnt(0)")
    for t in range(4):
        A(f"v_xor_b32 {h('po',4*t+2)}, {s('nl')}, {h('po',4*t+2)}")
        A(f"v_xor_b32 {h('po',4*t+3)}, {s('nh')}, {h('po',4*t+3)}")
    A(f"v_or3_b32 {h('e')}, {h('po',2)}, {h('po',3)}, {h('po',6)}")
    A(f"v_or3_b32 {h('e')}, {h('po',7)}, {h('po',10)}, {h('e')}")
    A(f"v_or3_b32 {h('e')}, {h('po',11)}, {h('po',14)}, {h('e')}")
    A(f"v_or_b32 {h('e')}, {h('po',15)}, {h('e')}")
    A(f"v_cmp_ne_u32 vcc, 0, {h('e')}")
    A(f"s_add_u32 {s('spin')}, {s('spin')}, 1")
    A("s_cmp_eq_u64 vcc, 0")
    A("s_cbranch_scc1 L_h_gotq")
    if hsleep: A(f"s_sleep {hsleep}")
    A(f"s_cmp_lt_u32 {s('spin')}, {spin}")
    A("s_cbranch_scc1 L_h_pollq")
    A("L_h_gotq:")
    A(f"v_lshlrev_b32 {h('a')}, 3, {v('lane')}")
    A(f"v_add_u32 {h('a')}, {L_Q}, {h('a')}")
    for t in range(4):
        A(f"ds_write_b64 {h('a')}, {hr('po',4*t,2)} offset:{t*512}")
    A("s_waitcnt lgkmcnt(0)")
    if stamps: A(f"s_memrealtime {sp('st2')}")
    A("s_barrier")

    srd("XO", "out", 3584 * 2)
    A(f"v_lshlrev_b32 {h('a')}, 5, {v('lane')}")
    A(f"v_lshrrev_b32 {h('b')}, 5, {v('lane')}")
    A(f"v_lshlrev_b32 {h('b')}, 3, {h('b')}")
    A(f"v_lshrrev_b32 {h('c')}, 3, {v('lane')}")
    A(f"v_lshlrev_b32 {h('d')}, 6, {h('c')}")
    A(f"v_lshlrev_b32 {h('c')}, 11, {h('c')}")
    A(f"v_and_b32 {h('e')}, 7, {v('lane')}")
    A(f"v_lshl_add_u32 {h('c')}, {h('e')}, 5, {h('c')}")
    A(f"v_mov_b32 {h('f')}, {L_CNT}")

    def wg_combine(seg):
        t = newl("hc")
        A(f"s_mov_b32 {s('spin')}, 0")
        A(f"{t}_poll:")
        A(f"ds_read_b32 {h('e')}, {h('f')} offset:{seg*4}")
        A("s_waitcnt lgkmcnt(0)")
        A(f"v_readfirstlane_b32 {s('t1')}, {h('e')}")
        A("s_nop 1")
        A(f"s_cmp_eq_u32 {s('t1')}, 4")
        A(f"s_cbranch_scc1 {t}_go")
        A(f"s_sleep {4 if seg == 0 else 1}")
        A(f"s_add_u32 {s('spin')}, {s('spin')}, 1")
        A(f"s_cmp_lt_u32 {s('spin')}, {spin*4}")
        A(f"s_cbranch_scc1 {t}_poll")
        A(f"{t}_go:")
        bases = [L_P + w * PREC for w in range(4)] if seg == 0 else [w * RING + 2 * UNIT for w in range(4)]
        for w in range(4):
            A(f"v_add_u32 {h('t',0)}, {bases[w]}, {h('a')}")
            A(f"v_add_u32 {h('t',1)}, {bases[w]}, {h('b')}")
            A(f"ds_read_b128 {hr('po',8*w,4)}, {h('t',0)}")
            A(f"ds_read_b128 {hr('po',8*w+4,4)}, {h('t',0)} offset:16")
            A(f"ds_read_b64 {hr('w',2*w,2)}, {h('t',1)} offset:2048")
        A("s_waitcnt lgkmcnt(0)")
        A(f"v_max_f32 {h('ml',0)}, {h('w',0)}, {h('w',2)}")
        A(f"v_max3_f32 {h('ml',0)}, {h('w',4)}, {h('w',6)}, {h('ml',0)}")
        for w in range(4):
            A(f"v_sub_f32 {h('w',2*w)}, {h('w',2*w)}, {h('ml',0)}")
        for w in range(4):
            A(f"v_exp_f32 {h('w',2*w)}, {h('w',2*w)}")
        A("s_nop 0")
        A(f"v_mul_f32 {h('ml',1)}, {h('w',0)}, {h('w',1)}")
        for w in range(1, 4):
            A(f"v_fmac_f32 {h('ml',1)}, {h('w',2*w)}, {h('w',2*w+1)}")
        for i in range(8):
            A(f"v_mul_f32 {h('po',i)}, {h('po',i)}, {h('w',0)}")
            for w in range(1, 4):
                A(f"v_fmac_f32 {h('po',i)}, {h('po',8*w+i)}, {h('w',2*w)}")
            A(f"v_min_u32 {h('po',i)}, 0xfffffffe, {h('po',i)}")
        A(f"v_min_u32 {h('ml',0)}, 0xfffffffe, {h('ml',0)}")
        A(f"v_min_u32 {h('ml',1)}, 0xfffffffe, {h('ml',1)}")
        A(f"s_add_u32 {s('t1')}, {s('bhA')}, {32*seg}")
        A(f"s_lshl_b32 {s('t2')}, {s('t1')}, 14")
        A(f"s_lshl_b32 {s('t3')}, {s('j')}, 8")
        A(f"s_add_u32 {s('t2')}, {s('t2')}, {s('t3')}")
        A(f"s_add_u32 {s('t2')}, {s('t2')}, {WS_PO}")
        A(f"buffer_store_dwordx4 {hr('po',0,4)}, {h('c')}, {sq('WS')}, {s('t2')} offen sc1")
        A(f"buffer_store_dwordx4 {hr('po',4,4)}, {h('c')}, {sq('WS')}, {s('t2')} offen offset:16 sc1")
        A(f"s_lshl_b32 {s('t2')}, {s('t1')}, 9")
        A(f"s_lshl_b32 {s('t3')}, {s('j')}, 3")
        A(f"s_add_u32 {s('t2')}, {s('t2')}, {s('t3')}")
        A(f"s_add_u32 {s('t2')}, {s('t2')}, {WS_ML}")
        A("s_mov_b32 exec_lo, 0x01010101")
        A("s_mov_b32 exec_hi, 0x01010101")
        A(f"buffer_store_dwordx2 {hr('ml',0,2)}, {h('d')}, {sq('WS')}, {s('t2')} offen sc1")
        A("s_mov_b64 exec, -1")

    A(f"v_lshlrev_b32 {h('t',2)}, 4, {v('lane')}")
    A(f"s_mov_b32 {s('spin')}, 0")
    A("L_h_pollall:")
    A("s_sleep 32")
    A("s_mov_b64 exec, 0xff")
    A(f"buffer_load_dword {h('e')}, {h('t',2)}, {sq('DBG')}, 0 offen offset:128 sc1")
    A("s_waitcnt vmcnt(0)")
    A(f"v_cmp_gt_u32 vcc, 32, {h('e')}")
    A("s_mov_b64 exec, -1")
    A(f"s_add_u32 {s('spin')}, {s('spin')}, 1")
    A("s_cmp_eq_u64 vcc, 0")
    A("s_cbranch_scc1 L_h_allok")
    A(f"s_cmp_lt_u32 {s('spin')}, {spin}")
    A("s_cbranch_scc1 L_h_pollall")
    A("L_h_allok:")
    A(f"v_mov_b32 {h('e')}, 1")
    A(f"ds_write_b32 {h('f')}, {h('e')} offset:8")
    wg_combine(0)
    GA, GB, GC, GO = H['t'] + 4, H['t'] + 5, H['t'] + 6, H['t'] + 7
    A(f"v_and_b32 v{GA}, 7, {v('lane')}")
    A(f"v_lshlrev_b32 v{GA}, 3, v{GA}")
    A(f"v_lshlrev_b32 v{GB}, 2, {v('g')}")
    A(f"v_add_u32 v{GC}, 16, v{GB}")
    A(f"v_lshlrev_b32 v{GO}, 3, {v('c')}")
    A(f"v_add_u32 v{GO}, {L_O}, v{GO}")
    def dpp8(op, reg, tmp):
        for mod in ("quad_perm:[1,0,3,2]", "quad_perm:[2,3,0,1]", "row_half_mirror"):
            A("s_nop 1")
            A(f"{op}_dpp {tmp}, {reg}, {reg} {mod} row_mask:0xf bank_mask:0xf")
            A(f"v_mov_b32 {reg}, {tmp}")
    SETS = [32, 48, 64]
    def poll(tag, nloads, issue, nregs, dst, sleep):
        def check(k):
            r = SETS[k]
            A(f"v_max_u32 {h('e')}, v{r}, v{r+1}")
            for i in range(2, nregs, 2):
                A(f"v_max3_u32 {h('e')}, v{r+i}, v{r+i+1}, {h('e')}")
            A(f"v_cmp_eq_u32 vcc, -1, {h('e')}")
            A("s_nop 1")
            A("s_cmp_eq_u64 vcc, 0")
            A(f"s_cbranch_scc1 {tag}_ok{k}")
        A(f"s_mov_b32 {s('spin')}, 0")
        issue(SETS[0])
        issue(SETS[1])
        A(f"{tag}_loop:")
        for k in range(3):
            if sleep: A(f"s_sleep {sleep}")
            issue(SETS[(k + 2) % 3])
            A(f"s_waitcnt vmcnt({2*nloads})")
            check(k)
        A(f"s_add_u32 {s('spin')}, {s('spin')}, 1")
        A(f"s_cmp_lt_u32 {s('spin')}, {spin}")
        A(f"s_cbranch_scc1 {tag}_loop")
        for k in range(3):
            A(f"{tag}_ok{k}:")
            for i in range(nregs):
                A(f"v_mov_b32 v{dst+i}, v{SETS[k]+i}")
            if k < 2: A(f"s_branch {tag}_done")
        A(f"{tag}_done:")
    def gather(seg, sleep):
        mlb, pob = (s('stride'), s('rstart')) if seg == 0 else (s('half'), s('rn'))
        def issue(r):
            A(f"buffer_load_dwordx4 v[{r}:{r+3}], {v('dma')}, {sq('WS')}, {pob} offen sc1")
            A(f"buffer_load_dwordx4 v[{r+4}:{r+7}], {v('dma')}, {sq('WS')}, {pob} offen offset:1024 sc1")
            A(f"buffer_load_dwordx2 v[{r+8}:{r+9}], v{GA}, {sq('WS')}, {mlb} offen sc1")
        poll(f"L_g{seg}", 3, issue, 10, H['po'], sleep)
        mm, ll = h('po', 8), h('po', 9)
        T0, T1 = h('po', 10), h('po', 11)
        A(f"v_mov_b32 {T0}, {mm}")
        dpp8("v_max_f32", T0, T1)
        A(f"v_sub_f32 {mm}, {mm}, {T0}")
        A(f"v_exp_f32 {mm}, {mm}")
        A("s_nop 0")
        A(f"v_mul_f32 {ll}, {ll}, {mm}")
        dpp8("v_add_f32", ll, T1)
        A(f"v_rcp_f32 {ll}, {ll}")
        A("s_nop 0")
        A(f"v_mul_f32 {mm}, {mm}, {ll}")
        A(f"ds_bpermute_b32 {h('po',12)}, v{GB}, {mm}")
        A(f"ds_bpermute_b32 {h('po',13)}, v{GC}, {mm}")
        A("s_waitcnt lgkmcnt(0)")
        for i in range(4):
            A(f"v_mul_f32 {h('po',i)}, {h('po',i)}, {h('po',12)}")
            A(f"v_fmac_f32 {h('po',i)}, {h('po',4+i)}, {h('po',13)}")
        for sw in ("v_permlane16_swap_b32", "v_permlane32_swap_b32"):
            for i in range(4):
                A(f"v_mov_b32 {h('po',4+i)}, {h('po',i)}")
            A("s_nop 1")
            for i in range(4):
                A(f"{sw} {h('po',i)}, {h('po',4+i)}")
            A("s_nop 1")
            for i in range(4):
                A(f"v_add_f32 {h('po',i)}, {h('po',i)}, {h('po',4+i)}")
        A(f"v_cvt_pk_bf16_f32 {h('po',14)}, {h('po',0)}, {h('po',1)}")
        A(f"v_cvt_pk_bf16_f32 {h('po',15)}, {h('po',2)}, {h('po',3)}")
        A("s_mov_b64 exec, 0xffff")
        A(f"ds_write_b64 v{GO}, {hr('po',14,2)} offset:{128*seg}")
        A("s_mov_b64 exec, -1")
    gather(0, 32)
    A("s_waitcnt vmcnt(0)")
    wg_combine(1)
    if stamps: A(f"s_memrealtime {sp('st3')}")
    gather(1, tsleep)
    A("s_waitcnt lgkmcnt(0)")
    A("s_barrier")
    if stamps: A(f"s_memrealtime {sp('st4')}")
    A(f"s_and_b32 {s('t0')}, s2, 31")
    A(f"s_cmp_ge_u32 {s('t0')}, 28")
    A(f"s_cbranch_scc1 {'L_stamps' if stamps else 'L_end'}")
    A("s_waitcnt vmcnt(0)")
    def fissue(r):
        for t in range(4):
            A(f"buffer_load_dwordx4 v[{r+4*t}:{r+4*t+3}], {v('dma')}, {sq('WS')}, {s('pool')} offen offset:{t*1024} sc1")
    poll("L_fin", 4, fissue, 16, H['po'], tsleep)
    for i in range(4):
        A(f"v_add_f32 {h('po',i)}, {h('po',i)}, {h('po',4+i)}")
        A(f"v_add_f32 {h('po',8+i)}, {h('po',8+i)}, {h('po',12+i)}")
        A(f"v_add_f32 {h('po',i)}, {h('po',i)}, {h('po',8+i)}")
    for mod in ("row_ror:4", "row_ror:8"):
        A("s_nop 1")
        for i in range(4):
            A(f"v_add_f32_dpp {h('po',4+i)}, {h('po',i)}, {h('po',i)} {mod} row_mask:0xf bank_mask:0xf")
        for i in range(4):
            A(f"v_mov_b32 {h('po',i)}, {h('po',4+i)}")
    for sw in ("v_permlane16_swap_b32", "v_permlane32_swap_b32"):
        for i in range(4):
            A(f"v_mov_b32 {h('po',4+i)}, {h('po',i)}")
        A("s_nop 1")
        for i in range(4):
            A(f"{sw} {h('po',i)}, {h('po',4+i)}")
        A("s_nop 1")
        for i in range(4):
            A(f"v_add_f32 {h('po',i)}, {h('po',i)}, {h('po',4+i)}")
    A(f"v_cvt_pk_bf16_f32 {h('w',0)}, {h('po',0)}, {h('po',1)}")
    A(f"v_cvt_pk_bf16_f32 {h('w',1)}, {h('po',2)}, {h('po',3)}")
    A(f"s_lshr_b32 {s('t1')}, s2, 5")
    A(f"s_mul_i32 {s('t1')}, {s('t1')}, 896")
    A(f"s_lshl_b32 {s('t0')}, {s('t0')}, 5")
    A(f"s_add_u32 {s('t1')}, {s('t1')}, {s('t0')}")
    A(f"v_lshlrev_b32 {h('a')}, 3, {v('lane')}")
    A("s_mov_b64 exec, 15")
    A(f"buffer_store_dwordx2 {hr('w',0,2)}, {h('a')}, {sq('XO')}, {s('t1')} offen")
    A("s_mov_b64 exec, -1")
    if stamps:
        A("L_stamps:")
        A("s_waitcnt vmcnt(0)")
        A(f"s_memrealtime {sp('st5')}")
        A("s_waitcnt lgkmcnt(0)")
        for i in range(12):
            A(f"v_mov_b32 v{32+i}, s{S['st0']+i}")
        A(f"s_mul_i32 {s('t1')}, s2, 5")
        A(f"s_add_u32 {s('t1')}, {s('t1')}, {s('wave')}")
        A(f"s_lshl_b32 {s('t1')}, {s('t1')}, 6")
        A(f"s_add_u32 {s('t1')}, {s('t1')}, {WS_DBG}")
        A("s_mov_b64 exec, 1")
        A(f"v_mov_b32 v44, {s('done')}")
        A(f"v_mov_b32 v45, 0")
        A(f"v_mov_b32 v46, 0")
        A(f"v_mov_b32 v47, 0")
        for i in range(4):
            A(f"buffer_store_dwordx4 v[{32+4*i}:{35+4*i}], {v('zero')}, {sq('WS')}, {s('t1')} offen offset:{16*i}")
    A("L_end:")
    A("s_endpgm")
    A('.section .rodata,"a"')
    A(".p2align 6")
    A(f".amdhsa_kernel {KNAME}")
    A(f"  .amdhsa_next_free_vgpr {NVGPR}")
    A("  .amdhsa_next_free_sgpr 100")
    A(f"  .amdhsa_accum_offset {NVGPR}")
    A("  .amdhsa_group_segment_fixed_size 0")
    A("  .amdhsa_kernarg_size 64")
    A("  .amdhsa_user_sgpr_count 2")
    A("  .amdhsa_user_sgpr_kernarg_segment_ptr 1")
    A("  .amdhsa_system_sgpr_workgroup_id_x 1")
    A(".end_amdhsa_kernel")
    open(name, "w").write("\n".join(out) + "\n")

if __name__ == "__main__":
    names = []
    for spec in sys.argv[1:]:
        kw = {}
        nm = "k"
        for kv in spec.split(","):
            if not kv: continue
            k, val = kv.split("=")
            kw[k] = int(val)
            nm += f"_{k}{val}"
        nm += ".s"
        gen(nm, **kw)
        names.append(nm)
    print(" ".join(names))
    print(json.dumps(["work/bench.py", "cdna_kernels/cdna_launch.py", "cdna_kernels/cdna_unwritten_srd_check.py", "standalone__gqa_block_cached__sampling_np.py"] + ["work/" + n for n in names]))
```

```python
import sys, json, struct, math

KNAME = "standalone__gqa_block_cached__sampling_kernel"

HEADER = """
Kernarg: x(0) k_cache(8) v_cache(16) wq(24) wo(32) out(40) debug(48) ws(56).
One launch, 256 workgroups (one per CU) x 5 waves: 4 stream waves + 1 helper wave.
 group g = wg>>3 owns kv head hkv = g>>2 of batches bp = g&3 (A) and bp+4 (B); its 8 workgroups split the keys.
 stream wave: LDS-DMA ring of 16-key units (8 KiB), QK^T and PV on MFMA, online softmax with the true running max;
   static share of A and B, then the rest of B by tickets (atomic counter per group) to balance the dies.
 helper wave: q = x@wq for 16 columns (all batches), exchanged through ws in granules tagged with a launch nonce
   (written to debug by workgroup 0); merges the wave partials, exchanges them inside the group, normalises,
   the stream waves apply 64 rows of wo, and 224 helpers sum the 64 contributions per output block.
 Hand-off buffers in ws are reset to a sentinel by their reader at start; writers wait until every workgroup has
 counted itself in (debug counters) before they publish. All polls are bounded.
"""

def f2u(x):
    return struct.unpack("<I", struct.pack("<f", x))[0]

def gen(name, R=4, C=1, NS=4, nB=9, tk=1, pre=1, gran=4, bar0=1, stamps=0, spin=1 << 16, hsleep=4, prio=3, CP=3, late=1, tsleep=1, LZ=96, rnds=1, osc=0, wnt=3, spol=0, rnt=0):
    nA = 16
    assert R + NS < nA and R >= 3 and C < R and CP <= R

    assert nB >= C + 2 and nB <= 16
    assert tk == 1
    NT = (16 - nB) * 32 // tk
    PIECE, UNIT = 1056, 8448
    RING = R * UNIT
    L_X = 4 * RING
    L_Q = L_X + 14336
    L_O = L_Q + 2048
    L_CNT = L_O + 256
    L_P = L_CNT + 64
    PREC = 2080
    LDS = L_P + 4 * PREC
    assert LDS <= 163840, LDS
    WS_Q, WS_CNT, WS_ML, WS_PO, WS_FIN, WS_DBG, WS_SIZE = 0x280000, 0x10000, 0x20000, 0x40000, 0x140000, 0x300000, 0x400000
    C1 = math.log2(math.e) / 16.0
    NEGBIG = f2u(-3.0e38)

    out = []
    A = out.append
    lab = [0]
    def newl(p):
        lab[0] += 1
        return f"L_{p}_{lab[0]}"

    S = dict(
        SRD=8, WS=12, W2=16, DBG=20, XO=24,
        wave=28, grp=29, j=30, hkv=31, bp=32, bhA=33,
        off=34, rem=35, stride=36, half=37, rstart=38, rn=39, phase=40, seg=41,
        lslot=42, rbase=43, rend=44, cslot=45, skip=46, ldone=47, grant=48, done=49,
        tslot=50, inval=51, pend=52, startB=53, pool=54, cnt=55, n=56, u=57,
        t0=58, t1=59, t2=60, t3=61, c1=62, cseg=63,
        st0=80, st1=82, st2=84, st3=86, st4=88, st5=90, msk=92, spin=94, t4=95, nl=96, nh=97,
    )
    s = lambda n: f"s{S[n]}"
    sq = lambda n: f"s[{S[n]}:{S[n]+3}]"
    sp = lambda n: f"s[{S[n]}:{S[n]+1}]"
    KA = dict(x=64, K=66, V=68, wq=70, wo=72, out=74, dbg=76, ws=78)

    V = dict(lane=1, dma=2, krd=3, vrd=4, sad=5, ta=6, tb=7, tick=8, zero=9, m=10, mc=11, l=12, smax=13,
             t0=14, t1=15, t2=16, t3=17, t4=18, t5=19, acc=20, p=24, s4=28, c=26, g=27,
             q=32, kf=64, o=96, x=160)
    v = lambda n, i=0: f"v{V[n]+i}"
    vr = lambda n, i, k: f"v[{V[n]+i}:{V[n]+i+k-1}]"
    NVGPR = 192

    for line in HEADER.strip().splitlines():
        A("; " + line)
    if stamps: A(f"; stamps5=1")
    A(f"; @launch grid=(256,1,1) block=(320,1,1) lds={LDS}")
    A('.amdgcn_target "amdgcn-amd-amdhsa--gfx950"')
    A(".text")
    A(f".globl {KNAME}")
    A(".p2align 8")
    A(f".type {KNAME},@function")
    A(f"{KNAME}:")
    A("s_cmp_ge_u32 s2, 256")
    A("s_cbranch_scc1 L_end")
    if stamps: A(f"s_memrealtime {sp('st0')}")
    A("s_load_dwordx16 s[64:79], s[0:1], 0")
    A("v_lshrrev_b32 v2, 6, v0")
    A(f"v_and_b32 {v('lane')}, 63, v0")
    A("s_nop 0")
    A(f"v_readfirstlane_b32 {s('wave')}, v2")
    A(f"s_lshr_b32 {s('grp')}, s2, 3")
    A(f"s_and_b32 {s('j')}, s2, 7")
    A(f"s_lshr_b32 {s('hkv')}, {s('grp')}, 2")
    A(f"s_and_b32 {s('bp')}, {s('grp')}, 3")
    A(f"s_lshl_b32 {s('bhA')}, {s('bp')}, 3")
    A(f"s_add_u32 {s('bhA')}, {s('bhA')}, {s('hkv')}")
    A(f"s_mov_b32 {s('msk')}, 0x00030003")
    A(f"s_mov_b32 s{S['msk']+1}, 0x00030003")
    A(f"v_lshlrev_b32 {v('dma')}, 4, {v('lane')}")
    A(f"v_and_b32 {v('c')}, 15, {v('lane')}")
    A(f"v_lshrrev_b32 {v('g')}, 4, {v('lane')}")
    A(f"v_mov_b32 {v('zero')}, 0")
    A("s_waitcnt lgkmcnt(0)")
    def srd(n, ptr, size):
        A(f"s_mov_b32 s{S[n]}, s{KA[ptr]}")
        A(f"s_and_b32 s{S[n]+1}, s{KA[ptr]+1}, 0xffff")
        A(f"s_mov_b32 s{S[n]+2}, {size}")
        A(f"s_mov_b32 s{S[n]+3}, 0x00020000")
    srd("WS", "ws", WS_SIZE)
    A(f"s_and_b32 s{KA['K']+1}, s{KA['K']+1}, 0xffff")
    A(f"s_and_b32 s{KA['V']+1}, s{KA['V']+1}, 0xffff")
    A(f"s_cmp_eq_u32 {s('wave')}, 4")
    A("s_cbranch_scc1 L_helper")

    srd("SRD", "K", 256 << 20)
    srd("W2", "wo", 4096 * 896)
    A(f"s_lshl_b32 {s('t0')}, {s('bhA')}, 22")
    A(f"s_mul_i32 {s('t1')}, {s('j')}, {nA*64*512}")
    A(f"s_mul_i32 {s('t2')}, {s('wave')}, {gran*1024}")
    A(f"s_add_u32 {s('off')}, {s('t0')}, {s('t1')}")
    A(f"s_add_u32 {s('off')}, {s('off')}, {s('t2')}")
    A(f"s_mov_b32 {s('rstart')}, {s('off')}")
    A(f"s_add_u32 {s('t0')}, {s('t0')}, {32 << 22}")
    A(f"s_mul_i32 {s('t1')}, {s('j')}, {nB*64*512}")
    A(f"s_add_u32 {s('startB')}, {s('t0')}, {s('t1')}")
    A(f"s_add_u32 {s('startB')}, {s('startB')}, {s('t2')}")
    A(f"s_add_u32 {s('pool')}, {s('t0')}, {8*nB*64*512}")
    A(f"s_mov_b32 {s('rem')}, {nA}")
    A(f"s_mov_b32 {s('rn')}, {nA}")
    A(f"s_mov_b32 {s('stride')}, {4*8192}")
    A(f"s_mov_b32 {s('half')}, {4*4096 if gran == 4 else 4096}")
    A(f"s_mov_b32 {s('phase')}, 0")
    A(f"s_mov_b32 {s('seg')}, 0")
    A(f"s_mul_i32 {s('rbase')}, {s('wave')}, {RING}")
    A(f"s_mov_b32 {s('lslot')}, {s('rbase')}")
    A(f"s_mov_b32 {s('cslot')}, {s('rbase')}")
    A(f"s_add_u32 {s('rend')}, {s('rbase')}, {RING}")
    A(f"s_mov_b32 {s('ldone')}, 0")
    A(f"s_mov_b32 {s('grant')}, 0")
    A(f"s_mov_b32 {s('done')}, 0")
    A(f"s_mov_b32 {s('tslot')}, 0")
    A(f"s_mov_b32 {s('inval')}, 0")
    A(f"s_mov_b32 {s('pend')}, 0")
    A(f"s_lshl_b32 {s('cnt')}, {s('grp')}, 8")
    A(f"s_add_u32 {s('cnt')}, {s('cnt')}, {WS_CNT}")
    A(f"s_mov_b32 {s('c1')}, {hex(f2u(C1))}")
    A(f"v_mov_b32 {v('tick')}, 1")
    if bar0: A("s_barrier")

    def issue_raw(static_only=False):
        t = newl("is")
        A(f"s_add_u32 {s('t0')}, {s('off')}, {s('half')}")
        for i in range(8):
            imm = (i % 4) * 1024
            A(f"s_add_u32 m0, {s('lslot')}, {i*PIECE - imm}")
            A("s_nop 0")
            so = s('off') if i < 4 else s('t0')
            A(f"buffer_load_dwordx4 {v('dma')}, {sq('SRD')}, {so} offen offset:{imm} {['nt', 'sc1 nt', 'sc0 sc1 nt', 'sc0 nt'][spol]} lds")
        A(f"s_add_u32 {s('lslot')}, {s('lslot')}, {UNIT}")
        A(f"s_cmp_eq_u32 {s('lslot')}, {s('rend')}")
        A(f"s_cselect_b32 {s('lslot')}, {s('rbase')}, {s('lslot')}")
        A(f"s_add_u32 {s('off')}, {s('off')}, {s('stride')}")
        A(f"s_sub_u32 {s('rem')}, {s('rem')}, 1")
        if static_only:
            return
        A(f"s_cmp_lg_u32 {s('rem')}, 0")
        A(f"s_cbranch_scc1 {t}_done")
        A(f"s_cmp_eq_u32 {s('phase')}, 0")
        A(f"s_cbranch_scc0 {t}_nseg")
        A(f"s_mov_b32 s{S['SRD']}, s{KA['V']}")
        A(f"s_mov_b32 s{S['SRD']+1}, s{KA['V']+1}")
        A(f"s_mov_b32 {s('off')}, {s('rstart')}")
        A(f"s_mov_b32 {s('rem')}, {s('rn')}")
        A(f"s_mov_b32 {s('phase')}, 1")
        A(f"s_branch {t}_done")
        A(f"{t}_nseg:")
        A(f"s_mov_b32 s{S['SRD']}, s{KA['K']}")
        A(f"s_mov_b32 s{S['SRD']+1}, s{KA['K']+1}")
        A(f"s_mov_b32 {s('phase')}, 0")
        A(f"s_add_u32 {s('seg')}, {s('seg')}, 1")
        A(f"s_cmp_eq_u32 {s('seg')}, 1")
        A(f"s_cbranch_scc0 {t}_dyn")
        A(f"s_mov_b32 {s('off')}, {s('startB')}")
        A(f"s_mov_b32 {s('rstart')}, {s('startB')}")
        A(f"s_mov_b32 {s('rem')}, {nB}")
        A(f"s_mov_b32 {s('rn')}, {nB}")
        A(f"s_branch {t}_done")
        A(f"{t}_dyn:")
        A(f"s_mov_b32 {s('t4')}, 0")
        A(f"v_mov_b32 {v('t4')}, {L_CNT + 8}")
        A(f"{t}_okp:")
        A(f"ds_read_b32 {v('t5')}, {v('t4')}")
        A("s_waitcnt lgkmcnt(0)")
        A(f"v_readfirstlane_b32 {s('t1')}, {v('t5')}")
        A(f"s_add_u32 {s('t4')}, {s('t4')}, 1")
        A(f"s_cmp_eq_u32 {s('t1')}, 1")
        A(f"s_cbranch_scc1 {t}_req")
        A("s_sleep 4")
        A(f"s_cmp_lt_u32 {s('t4')}, {spin*4}")
        A(f"s_cbranch_scc1 {t}_okp")
        A(f"{t}_req:")
        A(f"v_mov_b32 {v('tick')}, 1")
        A("s_mov_b64 exec, 1")
        A(f"buffer_atomic_add {v('tick')}, {v('zero')}, {sq('WS')}, {s('cnt')} offen sc0 sc1")
        A("s_mov_b64 exec, -1")
        A(f"s_mov_b32 {s('ldone')}, 1")
        A(f"{t}_done:")

    def wait_issue():
        t = newl("wi")
        A(f"s_cmp_eq_u32 {s('ldone')}, 0")
        A(f"s_cbranch_scc1 {t}_a")
        A("s_waitcnt vmcnt(0)")
        A(f"s_branch {t}_e")
        A(f"{t}_a:")
        A(f"s_waitcnt vmcnt({8*(C-1)})")
        A(f"s_cmp_eq_u32 {s('skip')}, 0")
        A(f"s_cbranch_scc1 {t}_b")
        A(f"s_sub_u32 {s('skip')}, {s('skip')}, 1")
        A(f"s_branch {t}_e")
        A(f"{t}_b:")
        issue_raw()
        A(f"{t}_e:")

    def adv_cslot():
        A(f"s_add_u32 {s('cslot')}, {s('cslot')}, {UNIT}")
        A(f"s_cmp_eq_u32 {s('cslot')}, {s('rend')}")
        A(f"s_cselect_b32 {s('cslot')}, {s('rbase')}, {s('cslot')}")

    for u in range(CP):
        issue_raw(True)
    A(f"v_and_b32 {v('t0')}, 7, {v('c')}")
    A(f"v_mul_u32_u24 {v('krd')}, {PIECE}, {v('t0')}")
    A(f"v_lshrrev_b32 {v('t0')}, 3, {v('c')}")
    A(f"v_lshl_add_u32 {v('krd')}, {v('t0')}, 9, {v('krd')}")
    A(f"v_lshl_add_u32 {v('krd')}, {v('g')}, 4, {v('krd')}")
    A(f"v_lshrrev_b32 {v('t0')}, 2, {v('lane')}")
    A(f"v_and_b32 {v('t0')}, 7, {v('t0')}")
    A(f"v_mul_u32_u24 {v('vrd')}, {PIECE}, {v('t0')}")
    A(f"v_lshrrev_b32 {v('t0')}, 5, {v('lane')}")
    A(f"v_lshl_add_u32 {v('vrd')}, {v('t0')}, 9, {v('vrd')}")
    A(f"v_and_b32 {v('t0')}, 3, {v('lane')}")
    A(f"v_lshl_add_u32 {v('vrd')}, {v('t0')}, 3, {v('vrd')}")
    A(f"v_and_b32 {v('t0')}, 1, {v('c')}")
    A(f"v_lshlrev_b32 {v('sad')}, 10, {v('t0')}")
    A(f"v_lshl_add_u32 {v('sad')}, {v('g')}, 4, {v('sad')}")
    A(f"s_lshl_b32 {s('t3')}, {s('wave')}, 11")
    A(f"s_add_u32 {s('t3')}, {s('t3')}, {L_X}")
    A(f"v_add_u32 {v('sad')}, {s('t3')}, {v('sad')}")
    for u in range(CP, R):
        A(f"s_waitcnt vmcnt({8*(CP-1)})")
        issue_raw(True)
    stage = [V['kf'], V['o'], V['o'] + 32, V['x']][:NS]
    for k in range(NS):
        A(f"s_waitcnt vmcnt({8*(CP-1)})")
        A(f"v_add_u32 {v('ta')}, {s('cslot')}, {v('krd')}")
        for jj in range(8):
            A(f"ds_read_b128 v[{stage[k]+4*jj}:{stage[k]+4*jj+3}], {v('ta')} offset:{jj*64}")
        adv_cslot()
        A("s_waitcnt lgkmcnt(0)")
        issue_raw(True)
    A(f"s_mov_b32 {s('skip')}, {R-C}")
    if stamps: A(f"s_memrealtime {sp('st1')}")
    A("s_barrier")
    if stamps: A(f"s_memrealtime {sp('st2')}")

    def load_q(seg):
        A(f"v_and_b32 {v('t0')}, 1, {v('c')}")
        A(f"v_lshlrev_b32 {v('t0')}, 9, {v('t0')}")
        A(f"v_lshl_add_u32 {v('t0')}, {v('g')}, 4, {v('t0')}")
        A(f"v_add_u32 {v('t0')}, {L_Q + seg*1024}, {v('t0')}")
        for jj in range(8):
            A(f"ds_read_b128 {vr('q', 4*jj, 4)}, {v('t0')} offset:{jj*64}")
        A("s_waitcnt lgkmcnt(0)")

    def qk(base):
        for jj in range(8):
            cc = "0" if jj == 0 else vr('acc', 0, 4)
            A(f"v_mfma_f32_16x16x32_bf16 {vr('acc',0,4)}, v[{base+4*jj}:{base+4*jj+3}], {vr('q',4*jj,4)}, {cc}")

    def s_store(addr_v, off):
        A("s_nop 7")
        A("s_nop 1")
        if rnds:
            A(f"v_cvt_pk_bf16_f32 {v('t0')}, {v('acc',0)}, {v('acc',1)}")
            A(f"v_cvt_pk_bf16_f32 {v('t1')}, {v('acc',2)}, {v('acc',3)}")
            A(f"v_lshlrev_b32 {v('acc',0)}, 16, {v('t0')}")
            A(f"v_and_b32 {v('acc',1)}, 0xffff0000, {v('t0')}")
            A(f"v_lshlrev_b32 {v('acc',2)}, 16, {v('t1')}")
            A(f"v_and_b32 {v('acc',3)}, 0xffff0000, {v('t1')}")
        A(f"v_max3_f32 {v('smax')}, {v('acc',0)}, {v('acc',1)}, {v('smax')}")
        A(f"v_max3_f32 {v('smax')}, {v('acc',2)}, {v('acc',3)}, {v('smax')}")
        A(f"s_mov_b64 exec, {sp('msk')}")
        A(f"ds_write_b128 {addr_v}, {vr('acc',0,4)} offset:{off}")
        A("s_mov_b64 exec, -1")

    def init_state():
        for i in range(64):
            A(f"v_mov_b32 {v('o', i)}, 0")
        A(f"v_mov_b32 {v('m')}, {hex(NEGBIG)}")
        A(f"v_mov_b32 {v('l')}, 0")

    def xrow(op, reg, tmp):
        for sw in ("v_permlane16_swap_b32", "v_permlane32_swap_b32"):
            A(f"v_mov_b32 {tmp}, {reg}")
            A("s_nop 1")
            A(f"{sw} {reg}, {tmp}")
            A("s_nop 1")
            A(f"{op} {reg}, {reg}, {tmp}")

    def k_unit():
        A(f"v_add_u32 {v('ta')}, {s('cslot')}, {v('krd')}")
        for jj in range(8):
            A(f"ds_read_b128 {vr('kf',4*jj,4)}, {v('ta')} offset:{jj*64}")
        adv_cslot()
        A(f"s_lshl_b32 {s('t3')}, {s('u')}, 6")
        A(f"v_add_u32 {v('tb')}, {s('t3')}, {v('sad')}")
        for jj in range(8):
            A(f"s_waitcnt lgkmcnt({7-jj})")
            cc = "0" if jj == 0 else vr('acc', 0, 4)
            A(f"v_mfma_f32_16x16x32_bf16 {vr('acc',0,4)}, {vr('kf',4*jj,4)}, {vr('q',4*jj,4)}, {cc}")
        s_store(v('tb'), 0)

    def softmax_update():
        xrow("v_max_f32", v('smax'), v('t0'))
        A(f"v_max_f32 {v('smax')}, {v('smax')}, {v('m')}")
        A(f"v_sub_f32 {v('t0')}, {v('m')}, {v('smax')}")
        A(f"v_mul_f32 {v('t0')}, {s('c1')}, {v('t0')}")
        A(f"v_exp_f32 {v('t0')}, {v('t0')}")
        A(f"v_mov_b32 {v('m')}, {v('smax')}")
        A(f"v_mul_f32 {v('mc')}, {s('c1')}, {v('smax')}")
        A(f"v_mul_f32 {v('l')}, {v('l')}, {v('t0')}")
        for i in range(64):
            A(f"v_mul_f32 {v('o', i)}, {v('o', i)}, {v('t0')}")

    def v_unit():
        A(f"s_lshl_b32 {s('t3')}, {s('u')}, 6")
        A(f"v_add_u32 {v('tb')}, {s('t3')}, {v('sad')}")
        A(f"v_add_u32 {v('ta')}, {s('cslot')}, {v('vrd')}")
        A(f"ds_read_b128 {vr('s4',0,4)}, {v('tb')}")
        for dt in range(16):
            A(f"ds_read_b64_tr_b16 {vr('kf',2*dt,2)}, {v('ta')} offset:{dt*32}")
        adv_cslot()
        A("s_waitcnt lgkmcnt(15)")
        for i in range(4):
            A(f"v_fma_f32 {v('s4',i)}, {v('s4',i)}, {s('c1')}, -{v('mc')}")
        for i in range(4):
            A(f"v_exp_f32 {v('s4',i)}, {v('s4',i)}")
        A("s_nop 0")
        A(f"v_cvt_pk_bf16_f32 {v('p',0)}, {v('s4',0)}, {v('s4',1)}")
        A(f"v_cvt_pk_bf16_f32 {v('p',1)}, {v('s4',2)}, {v('s4',3)}")
        A(f"v_lshlrev_b32 {v('t0')}, 16, {v('p',0)}")
        A(f"v_and_b32 {v('t1')}, 0xffff0000, {v('p',0)}")
        A(f"v_lshlrev_b32 {v('t2')}, 16, {v('p',1)}")
        A(f"v_and_b32 {v('t3')}, 0xffff0000, {v('p',1)}")
        A(f"v_add_f32 {v('t0')}, {v('t0')}, {v('t1')}")
        A(f"v_add_f32 {v('t2')}, {v('t2')}, {v('t3')}")
        A(f"v_add_f32 {v('t0')}, {v('t0')}, {v('t2')}")
        A(f"v_add_f32 {v('l')}, {v('l')}, {v('t0')}")
        for dt in range(16):
            A(f"s_waitcnt lgkmcnt({15-dt})")
            A(f"v_mfma_f32_16x16x16_bf16 {vr('o',4*dt,4)}, {vr('kf',2*dt,2)}, {vr('p',0,2)}, {vr('o',4*dt,4)}")

    load_q(0)
    A(f"v_mov_b32 {v('smax')}, {hex(NEGBIG)}")
    for k in range(NS):
        qk(stage[k])
        s_store(v('sad'), k * 64)
        A("s_nop 3")
    init_state()
    A(f"s_mov_b32 {s('n')}, {nA}")
    A(f"s_mov_b32 {s('u')}, {NS}")
    A(f"s_mov_b32 {s('cseg')}, 0")
    A("s_branch L_kloop")

    A("L_seg:")
    A(f"v_mov_b32 {v('smax')}, {hex(NEGBIG)}")
    A(f"s_mov_b32 {s('u')}, 0")
    A("L_kloop:")
    wait_issue()
    k_unit()
    A(f"s_add_u32 {s('u')}, {s('u')}, 1")
    A(f"s_cmp_lt_u32 {s('u')}, {s('n')}")
    A("s_cbranch_scc1 L_kloop")
    softmax_update()
    A(f"s_mov_b32 {s('u')}, 0")
    A("L_vloop:")
    wait_issue()
    v_unit()
    A(f"s_add_u32 {s('u')}, {s('u')}, 1")
    A(f"s_cmp_lt_u32 {s('u')}, {s('n')}")
    A("s_cbranch_scc1 L_vloop")

    def write_partial(base_s, cnt_off):
        A("s_nop 15")
        A(f"v_mov_b32 {v('t1')}, {v('l')}")
        xrow("v_add_f32", v('t1'), v('t0'))
        A(f"v_mov_b32 {v('t0')}, {v('mc')}")
        A(f"v_lshlrev_b32 {v('ta')}, 10, {v('c')}")
        A(f"v_lshl_add_u32 {v('ta')}, {v('g')}, 4, {v('ta')}")
        A(f"v_add_u32 {v('ta')}, {base_s}, {v('ta')}")
        A(f"v_lshlrev_b32 {v('tb')}, 3, {v('c')}")
        A(f"v_add_u32 {v('tb')}, {base_s}, {v('tb')}")
        A(f"s_mov_b64 exec, {sp('msk')}")
        for dt in range(16):
            A(f"ds_write_b128 {v('ta')}, {vr('o',4*dt,4)} offset:{dt*64}")
        A("s_mov_b64 exec, 3")
        A(f"ds_write_b64 {v('tb')}, {vr('t0',0,2)} offset:2048")
        A("s_mov_b64 exec, 1")
        A(f"v_mov_b32 {v('t2')}, 1")
        A(f"v_mov_b32 {v('t3')}, {L_CNT + cnt_off}")
        A("s_waitcnt lgkmcnt(0)")
        A(f"ds_add_u32 {v('t3')}, {v('t2')}")
        A("s_mov_b64 exec, -1")

    A(f"s_cmp_eq_u32 {s('cseg')}, 0")
    A("s_cbranch_scc0 L_segB")
    A(f"s_mul_i32 {s('t3')}, {s('wave')}, {PREC}")
    A(f"s_add_u32 {s('t3')}, {s('t3')}, {L_P}")
    write_partial(s('t3'), 0)
    init_state()
    load_q(1)
    A(f"s_mov_b32 {s('cseg')}, 1")
    A(f"s_mov_b32 {s('n')}, {nB}")
    A("s_branch L_seg")
    A("L_segB:")
    A(f"s_mov_b32 {s('u')}, 0")
    A(f"s_mov_b32 {s('half')}, 4096")
    def req():
        A(f"v_mov_b32 {v('tick')}, 1")
        A("s_mov_b64 exec, 1")
        A(f"buffer_atomic_add {v('tick')}, {v('zero')}, {sq('WS')}, {s('cnt')} offen sc0 sc1")
        A("s_mov_b64 exec, -1")
    def issue_ticket():
        A(f"s_mov_b32 {s('tslot')}, {s('t1')}")
        A(f"s_lshl_b32 {s('rstart')}, {s('t1')}, 13")
        A(f"s_add_u32 {s('rstart')}, {s('rstart')}, {s('pool')}")
        A(f"s_mov_b32 {s('off')}, {s('rstart')}")
        A(f"s_mov_b32 s{S['SRD']}, s{KA['K']}")
        A(f"s_mov_b32 s{S['SRD']+1}, s{KA['K']+1}")
        issue_raw(True)
        A(f"s_mov_b32 {s('off')}, {s('rstart')}")
        A(f"s_mov_b32 s{S['SRD']}, s{KA['V']}")
        A(f"s_mov_b32 s{S['SRD']+1}, s{KA['V']+1}")
        issue_raw(True)
        A(f"s_add_u32 {s('done')}, {s('done')}, 1")
    A("s_waitcnt vmcnt(0)")
    A(f"v_readfirstlane_b32 {s('t1')}, {v('tick')}")
    A("s_nop 0")
    A(f"s_cmp_lt_u32 {s('t1')}, {NT}")
    A("s_cbranch_scc0 L_sdone")
    issue_ticket()
    A("L_dyn:")
    A(f"v_mov_b32 {v('smax')}, {hex(NEGBIG)}")
    A("s_waitcnt vmcnt(8)")
    A(f"s_cmp_lt_u32 {s('tslot')}, {max(NT - LZ, 0)}")
    A("s_cbranch_scc0 L_lazy")
    req()
    k_unit()
    softmax_update()
    A("s_waitcnt vmcnt(0)")
    A(f"v_readfirstlane_b32 {s('t1')}, {v('tick')}")
    A(f"s_mov_b32 {s('pend')}, 0")
    A(f"s_cmp_lt_u32 {s('t1')}, {NT}")
    A("s_cbranch_scc0 L_dyn_last")
    issue_ticket()
    A(f"s_mov_b32 {s('pend')}, 1")
    A("L_dyn_last:")
    v_unit()
    A(f"s_cmp_eq_u32 {s('pend')}, 1")
    A("s_cbranch_scc1 L_dyn")
    A("s_branch L_sdone")
    A("L_lazy:")
    k_unit()
    softmax_update()
    A("s_waitcnt vmcnt(0)")
    req()
    v_unit()
    A("s_waitcnt vmcnt(0)")
    A(f"v_readfirstlane_b32 {s('t1')}, {v('tick')}")
    A("s_nop 0")
    A(f"s_cmp_lt_u32 {s('t1')}, {NT}")
    A("s_cbranch_scc0 L_sdone")
    issue_ticket()
    A("s_branch L_dyn")
    A("L_sdone:")
    if stamps: A(f"s_memrealtime {sp('st3')}")
    A(f"s_add_u32 {s('t3')}, {s('rbase')}, {2*UNIT}")
    write_partial(s('t3'), 4)
    A(f"v_mul_u32_u24 {v('t4')}, 896, {v('g')}")
    A(f"v_lshl_add_u32 {v('t4')}, {v('c')}, 4, {v('t4')}")
    A(f"s_lshl_b32 {s('t0')}, {s('hkv')}, 3")
    A(f"s_add_u32 {s('t0')}, {s('t0')}, {s('j')}")
    A(f"s_mul_i32 {s('t1')}, {s('t0')}, {64*896}")
    A(f"s_mul_i32 {s('t2')}, {s('wave')}, 224")
    A(f"s_add_u32 {s('t1')}, {s('t1')}, {s('t2')}")
    for i in range(16):
        A(f"s_add_u32 m0, {s('rbase')}, {i*PIECE}")
        A(f"s_add_u32 {s('t2')}, {s('t1')}, {i*3584}")
        A(f"buffer_load_dwordx4 {v('t4')}, {sq('W2')}, {s('t2')} offen{' nt' if wnt & 2 else ''} lds")
    A(f"v_mul_u32_u24 {v('ta')}, {2*PIECE}, {v('g')}")
    A(f"v_lshrrev_b32 {v('t0')}, 2, {v('c')}")
    A(f"v_lshl_add_u32 {v('ta')}, {v('t0')}, 8, {v('ta')}")
    A(f"v_and_b32 {v('t0')}, 3, {v('c')}")
    A(f"v_lshl_add_u32 {v('ta')}, {v('t0')}, 3, {v('ta')}")
    A(f"v_add_u32 {v('ta')}, {s('rbase')}, {v('ta')}")
    A(f"v_and_b32 {v('t0')}, 1, {v('c')}")
    A(f"v_lshlrev_b32 {v('tb')}, 7, {v('t0')}")
    A(f"v_lshl_add_u32 {v('tb')}, {v('g')}, 4, {v('tb')}")
    A(f"v_add_u32 {v('tb')}, {L_O}, {v('tb')}")
    A(f"v_lshlrev_b32 {v('t5')}, 19, {v('c')}")
    A(f"v_lshl_add_u32 {v('t5')}, {v('g')}, 4, {v('t5')}")
    A(f"s_lshl_b32 {s('t1')}, {s('bp')}, 5")
    A(f"s_mul_i32 {s('t2')}, {s('wave')}, 7")
    A(f"s_add_u32 {s('t1')}, {s('t1')}, {s('t2')}")
    A(f"s_lshl_b32 {s('t1')}, {s('t1')}, 6")
    A(f"s_add_u32 {s('t1')}, {s('t1')}, {s('t0')}")
    A(f"s_lshl_b32 {s('t1')}, {s('t1')}, 6")
    A(f"s_add_u32 {s('t1')}, {s('t1')}, {WS_FIN}")
    A("s_waitcnt vmcnt(0)")
    for nt in range(7):
        for ks in range(2):
            for h in range(2):
                r = V['o'] + (nt * 2 + ks) * 4 + h * 2
                A(f"ds_read_b64_tr_b16 v[{r}:{r+1}], {v('ta')} offset:{ks*UNIT + h*PIECE + nt*32}")
    A("s_waitcnt lgkmcnt(0)")
    A("s_barrier")
    A(f"ds_read_b128 {vr('q',0,4)}, {v('tb')}")
    A(f"ds_read_b128 {vr('q',4,4)}, {v('tb')} offset:64")
    A("s_waitcnt lgkmcnt(0)")
    for nt in range(7):
        for ks in range(2):
            r = V['o'] + (nt * 2 + ks) * 4
            cc = "0" if ks == 0 else vr('kf', 4 * nt, 4)
            A(f"v_mfma_f32_16x16x32_bf16 {vr('kf',4*nt,4)}, v[{r}:{r+3}], {vr('q',4*ks,4)}, {cc}")
    A("s_nop 7")
    A("s_nop 3")
    for i in range(28):
        A(f"v_min_u32 {v('kf',i)}, 0xfffffffe, {v('kf',i)}")
    A(f"s_mov_b64 exec, {sp('msk')}")
    for nt in range(7):
        A(f"s_add_u32 {s('t2')}, {s('t1')}, {nt*4096}")
        A(f"buffer_store_dwordx4 {vr('kf',4*nt,4)}, {v('t5')}, {sq('WS')}, {s('t2')} offen sc1")
    A("s_mov_b64 exec, -1")
    if stamps:
        A(f"s_memrealtime {sp('st4')}")
        A("s_branch L_stamps")
    A("s_endpgm")

    A("L_helper:")
    if prio: A(f"s_setprio {prio}")
    srd("W2", "wq", 448 * 8192)
    srd("DBG", "dbg", 256)
    srd("XO", "x", 8 * 896)
    H = dict(xf=32, wf=96, acc=100, a=104, b=105, c=106, d=107, e=108, f=109, sent=112, ml=116, po=120, w=152, t=160)
    h = lambda n, i=0: f"v{H[n]+i}"
    hr = lambda n, i, k: f"v[{H[n]+i}:{H[n]+i+k-1}]"
    A("s_cmp_lg_u32 s2, 0")
    A("s_cbranch_scc1 L_h_nowr")
    A(f"s_memrealtime s[{S['nl']}:{S['nh']}]")
    A("s_waitcnt lgkmcnt(0)")
    A(f"s_or_b32 {s('nl')}, {s('nl')}, 1")
    A(f"v_mov_b32 {h('sent',0)}, {s('nl')}")
    A(f"v_mov_b32 {h('sent',1)}, {s('nh')}")
    A(f"v_mov_b32 {h('sent',2)}, 0")
    A(f"v_mov_b32 {h('sent',3)}, 0")
    A("s_mov_b64 exec, 1")
    A(f"buffer_atomic_cmpswap_x2 {hr('sent',0,4)}, {v('zero')}, {sq('DBG')}, 0 offen sc1")
    A("s_mov_b64 exec, -1")
    A("L_h_nowr:")
    A(f"s_lshl_b32 {s('t0')}, {s('hkv')}, 5")
    A(f"s_lshl_b32 {s('t1')}, {s('j')}, 2")
    A(f"s_add_u32 {s('t0')}, {s('t0')}, {s('t1')}")
    A(f"s_add_u32 {s('t0')}, {s('t0')}, {s('bp')}")
    A(f"s_lshl_b32 {s('off')}, {s('t0')}, 5")
    A(f"v_lshrrev_b32 {h('a')}, 1, {v('lane')}")
    A(f"v_lshlrev_b32 {h('a')}, 13, {h('a')}")
    A(f"v_and_b32 {h('b')}, 1, {v('lane')}")
    A(f"v_lshl_add_u32 {h('a')}, {h('b')}, 4, {h('a')}")
    for i in range(14):
        A(f"s_mov_b32 m0, {L_X + i*1024}")
        A(f"s_add_u32 {s('t1')}, {s('off')}, {i*32*8192}")
        A(f"buffer_load_dwordx4 {h('a')}, {sq('W2')}, {s('t1')} offen{' nt' if wnt & 1 else ''} lds")
    A(f"v_and_b32 {h('b')}, 7, {v('c')}")
    A(f"v_mul_u32_u24 {h('b')}, 896, {h('b')}")
    A(f"v_lshl_add_u32 {h('b')}, {v('g')}, 4, {h('b')}")
    for ks in range(14):
        A(f"buffer_load_dwordx4 {hr('xf',4*ks,4)}, {h('b')}, {sq('XO')}, 0 offen offset:{ks*64}")
    if bar0: A("s_barrier")
    for i in range(4):
        A(f"v_mov_b32 {h('sent',i)}, -1")
    A(f"s_lshl_b32 {s('t0')}, {s('bhA')}, 3")
    A(f"s_add_u32 {s('t0')}, {s('t0')}, {s('j')}")
    A(f"s_lshl_b32 {s('rstart')}, {s('t0')}, 11")
    A(f"s_add_u32 {s('rstart')}, {s('rstart')}, {WS_PO}")
    A(f"s_add_u32 {s('rn')}, {s('rstart')}, {256*2048}")
    A(f"s_lshl_b32 {s('stride')}, {s('t0')}, 6")
    A(f"s_add_u32 {s('stride')}, {s('stride')}, {WS_ML}")
    A(f"s_add_u32 {s('half')}, {s('stride')}, {256*64}")
    A(f"s_lshl_b32 {s('pool')}, s2, 12")
    A(f"s_add_u32 {s('pool')}, {s('pool')}, {WS_FIN}")
    for base in ('rstart', 'rn'):
        for t in range(2):
            A(f"buffer_store_dwordx4 {hr('sent',0,4)}, {v('dma')}, {sq('WS')}, {s(base)} offen offset:{t*1024} sc1{' nt' if rnt else ''}")
    A(f"s_and_b32 {s('t1')}, s2, 31")
    A(f"s_cmp_ge_u32 {s('t1')}, 28")
    A("s_cbranch_scc1 L_h_nofin")
    for t in range(4):
        A(f"buffer_store_dwordx4 {hr('sent',0,4)}, {v('dma')}, {sq('WS')}, {s('pool')} offen offset:{t*1024} sc1{' nt' if rnt else ''}")
    A("L_h_nofin:")
    A("s_mov_b64 exec, 15")
    A(f"buffer_store_dwordx4 {hr('sent',0,4)}, {v('dma')}, {sq('WS')}, {s('stride')} offen sc1")
    A(f"buffer_store_dwordx4 {hr('sent',0,4)}, {v('dma')}, {sq('WS')}, {s('half')} offen sc1")
    A("s_mov_b64 exec, 1")
    A(f"s_cmp_eq_u32 {s('j')}, 0")
    A("s_cbranch_scc0 L_h_nocnt")
    A(f"s_lshl_b32 {s('t1')}, {s('grp')}, 8")
    A(f"s_add_u32 {s('t1')}, {s('t1')}, {WS_CNT}")
    A(f"buffer_store_dword {v('zero')}, {v('zero')}, {sq('WS')}, {s('t1')} offen sc1")
    A("L_h_nocnt:")
    A(f"v_mov_b32 {h('c')}, {L_CNT}")
    A(f"v_mov_b32 {h('e')}, 0")
    A(f"v_mov_b32 {h('f')}, 0")
    A(f"ds_write_b64 {h('c')}, {hr('e',0,2)}")
    A(f"ds_write_b64 {h('c')}, {hr('e',0,2)} offset:8")
    A("s_mov_b64 exec, -1")
    A(f"v_lshrrev_b32 {h('c')}, 2, {v('c')}")
    A(f"v_lshl_add_u32 {h('c')}, {v('g')}, 3, {h('c')}")
    A(f"v_lshlrev_b32 {h('c')}, 5, {h('c')}")
    A(f"v_and_b32 {h('d')}, 3, {v('c')}")
    A(f"v_lshl_add_u32 {h('c')}, {h('d')}, 3, {h('c')}")
    A(f"v_add_u32 {h('c')}, {L_X}, {h('c')}")
    A(f"v_lshlrev_b32 {h('d')}, 14, {v('c')}")
    A(f"v_lshl_add_u32 {h('d')}, {v('g')}, 4, {h('d')}")
    A(f"s_lshl_b32 {s('off')}, {s('off')}, 1")
    A(f"s_add_u32 {s('off')}, {s('off')}, {WS_Q}")
    A(f"buffer_load_dwordx2 {hr('ml',0,2)}, {v('zero')}, {sq('DBG')}, 0 offen sc1")
    A("s_waitcnt vmcnt(0)")
    if stamps: A(f"s_memrealtime {sp('st1')}")
    A("s_mov_b64 exec, 1")
    A(f"v_mov_b32 {h('e')}, 1")
    A(f"s_lshl_b32 {s('cnt')}, {s('hkv')}, 4")
    A(f"buffer_atomic_add {h('e')}, {v('zero')}, {sq('DBG')}, {s('cnt')} offen offset:128 sc1")
    A("s_mov_b64 exec, -1")
    for ks in range(14):
        r = H['po'] + (ks % 4) * 4
        A(f"ds_read_b64_tr_b16 v[{r}:{r+1}], {h('c')} offset:{ks*1024}")
        A(f"ds_read_b64_tr_b16 v[{r+2}:{r+3}], {h('c')} offset:{ks*1024 + 128}")
        A("s_waitcnt lgkmcnt(0)")
        cc = "0" if ks == 0 else hr('acc', 0, 4)
        A(f"v_mfma_f32_16x16x32_bf16 {hr('acc',0,4)}, v[{r}:{r+3}], {hr('xf',4*ks,4)}, {cc}")
    A(f"s_mov_b32 {s('spin')}, 0")
    A("L_h_nonce:")
    A(f"v_readfirstlane_b32 {s('nl')}, {h('ml',0)}")
    A(f"v_readfirstlane_b32 {s('nh')}, {h('ml',1)}")
    A(f"s_add_u32 {s('spin')}, {s('spin')}, 1")
    A(f"s_cmp_lg_u32 {s('nl')}, 0")
    A("s_cbranch_scc1 L_h_gotn")
    A(f"buffer_load_dwordx2 {hr('ml',0,2)}, {v('zero')}, {sq('DBG')}, 0 offen sc1")
    A("s_waitcnt vmcnt(0)")
    A(f"s_cmp_lt_u32 {s('spin')}, {spin}")
    A("s_cbranch_scc1 L_h_nonce")
    A("L_h_gotn:")
    A("s_nop 7")
    A(f"v_cvt_pk_bf16_f32 {h('sent',0)}, {h('acc',0)}, {h('acc',1)}")
    A(f"v_cvt_pk_bf16_f32 {h('sent',1)}, {h('acc',2)}, {h('acc',3)}")
    A(f"v_mov_b32 {h('sent',2)}, {s('nl')}")
    A(f"v_mov_b32 {h('sent',3)}, {s('nh')}")
    A("s_mov_b32 exec_lo, 0x00ff00ff")
    A("s_mov_b32 exec_hi, 0x00ff00ff")
    A(f"buffer_store_dwordx4 {hr('sent',0,4)}, {h('d')}, {sq('WS')}, {s('off')} offen sc1")
    A("s_mov_b64 exec, -1")
    A(f"s_lshl_b32 {s('t1')}, {s('bp')}, 14")
    A(f"s_lshl_b32 {s('t2')}, {s('hkv')}, 11")
    A(f"s_add_u32 {s('t1')}, {s('t1')}, {s('t2')}")
    A(f"s_add_u32 {s('t1')}, {s('t1')}, {WS_Q}")
    A(f"s_add_u32 {s('t2')}, {s('t1')}, {4*16384}")
    A(f"s_mov_b32 {s('spin')}, 0")
    A("L_h_pollq:")
    A(f"buffer_load_dwordx4 {hr('po',0,4)}, {v('dma')}, {sq('WS')}, {s('t1')} offen sc1")
    A(f"buffer_load_dwordx4 {hr('po',4,4)}, {v('dma')}, {sq('WS')}, {s('t1')} offen offset:1024 sc1")
    A(f"buffer_load_dwordx4 {hr('po',8,4)}, {v('dma')}, {sq('WS')}, {s('t2')} offen sc1")
    A(f"buffer_load_dwordx4 {hr('po',12,4)}, {v('dma')}, {sq('WS')}, {s('t2')} offen offset:1024 sc1")
    A("s_waitcnt vmcnt(0)")
    for t in range(4):
        A(f"v_xor_b32 {h('po',4*t+2)}, {s('nl')}, {h('po',4*t+2)}")
        A(f"v_xor_b32 {h('po',4*t+3)}, {s('nh')}, {h('po',4*t+3)}")
    A(f"v_or3_b32 {h('e')}, {h('po',2)}, {h('po',3)}, {h('po',6)}")
    A(f"v_or3_b32 {h('e')}, {h('po',7)}, {h('po',10)}, {h('e')}")
    A(f"v_or3_b32 {h('e')}, {h('po',11)}, {h('po',14)}, {h('e')}")
    A(f"v_or_b32 {h('e')}, {h('po',15)}, {h('e')}")
    A(f"v_cmp_ne_u32 vcc, 0, {h('e')}")
    A(f"s_add_u32 {s('spin')}, {s('spin')}, 1")
    A("s_cmp_eq_u64 vcc, 0")
    A("s_cbranch_scc1 L_h_gotq")
    if hsleep: A(f"s_sleep {hsleep}")
    A(f"s_cmp_lt_u32 {s('spin')}, {spin}")
    A("s_cbranch_scc1 L_h_pollq")
    A("L_h_gotq:")
    A(f"v_lshlrev_b32 {h('a')}, 3, {v('lane')}")
    A(f"v_add_u32 {h('a')}, {L_Q}, {h('a')}")
    for t in range(4):
        A(f"ds_write_b64 {h('a')}, {hr('po',4*t,2)} offset:{t*512}")
    A("s_waitcnt lgkmcnt(0)")
    if stamps: A(f"s_memrealtime {sp('st2')}")
    A("s_barrier")

    srd("XO", "out", 3584 * 2)
    A(f"v_lshlrev_b32 {h('a')}, 5, {v('lane')}")
    A(f"v_lshrrev_b32 {h('b')}, 5, {v('lane')}")
    A(f"v_lshlrev_b32 {h('b')}, 3, {h('b')}")
    A(f"v_lshrrev_b32 {h('c')}, 3, {v('lane')}")
    A(f"v_lshlrev_b32 {h('d')}, 6, {h('c')}")
    A(f"v_lshlrev_b32 {h('c')}, 11, {h('c')}")
    A(f"v_and_b32 {h('e')}, 7, {v('lane')}")
    A(f"v_lshl_add_u32 {h('c')}, {h('e')}, 5, {h('c')}")
    A(f"v_mov_b32 {h('f')}, {L_CNT}")

    def wg_combine(seg):
        t = newl("hc")
        A(f"s_mov_b32 {s('spin')}, 0")
        A(f"{t}_poll:")
        A(f"ds_read_b32 {h('e')}, {h('f')} offset:{seg*4}")
        A("s_waitcnt lgkmcnt(0)")
        A(f"v_readfirstlane_b32 {s('t1')}, {h('e')}")
        A("s_nop 1")
        A(f"s_cmp_eq_u32 {s('t1')}, 4")
        A(f"s_cbranch_scc1 {t}_go")
        A(f"s_sleep {4 if seg == 0 else 1}")
        A(f"s_add_u32 {s('spin')}, {s('spin')}, 1")
        A(f"s_cmp_lt_u32 {s('spin')}, {spin*4}")
        A(f"s_cbranch_scc1 {t}_poll")
        A(f"{t}_go:")
        bases = [L_P + w * PREC for w in range(4)] if seg == 0 else [w * RING + 2 * UNIT for w in range(4)]
        for w in range(4):
            A(f"v_add_u32 {h('t',0)}, {bases[w]}, {h('a')}")
            A(f"v_add_u32 {h('t',1)}, {bases[w]}, {h('b')}")
            A(f"ds_read_b128 {hr('po',8*w,4)}, {h('t',0)}")
            A(f"ds_read_b128 {hr('po',8*w+4,4)}, {h('t',0)} offset:16")
            A(f"ds_read_b64 {hr('w',2*w,2)}, {h('t',1)} offset:2048")
        A("s_waitcnt lgkmcnt(0)")
        A(f"v_max_f32 {h('ml',0)}, {h('w',0)}, {h('w',2)}")
        A(f"v_max3_f32 {h('ml',0)}, {h('w',4)}, {h('w',6)}, {h('ml',0)}")
        for w in range(4):
            A(f"v_sub_f32 {h('w',2*w)}, {h('w',2*w)}, {h('ml',0)}")
        for w in range(4):
            A(f"v_exp_f32 {h('w',2*w)}, {h('w',2*w)}")
        A("s_nop 0")
        A(f"v_mul_f32 {h('ml',1)}, {h('w',0)}, {h('w',1)}")
        for w in range(1, 4):
            A(f"v_fmac_f32 {h('ml',1)}, {h('w',2*w)}, {h('w',2*w+1)}")
        for i in range(8):
            A(f"v_mul_f32 {h('po',i)}, {h('po',i)}, {h('w',0)}")
            for w in range(1, 4):
                A(f"v_fmac_f32 {h('po',i)}, {h('po',8*w+i)}, {h('w',2*w)}")
            A(f"v_min_u32 {h('po',i)}, 0xfffffffe, {h('po',i)}")
        A(f"v_min_u32 {h('ml',0)}, 0xfffffffe, {h('ml',0)}")
        A(f"v_min_u32 {h('ml',1)}, 0xfffffffe, {h('ml',1)}")
        A(f"s_add_u32 {s('t1')}, {s('bhA')}, {32*seg}")
        A(f"s_lshl_b32 {s('t2')}, {s('t1')}, 14")
        A(f"s_lshl_b32 {s('t3')}, {s('j')}, 8")
        A(f"s_add_u32 {s('t2')}, {s('t2')}, {s('t3')}")
        A(f"s_add_u32 {s('t2')}, {s('t2')}, {WS_PO}")
        A(f"buffer_store_dwordx4 {hr('po',0,4)}, {h('c')}, {sq('WS')}, {s('t2')} offen sc1")
        A(f"buffer_store_dwordx4 {hr('po',4,4)}, {h('c')}, {sq('WS')}, {s('t2')} offen offset:16 sc1")
        A(f"s_lshl_b32 {s('t2')}, {s('t1')}, 9")
        A(f"s_lshl_b32 {s('t3')}, {s('j')}, 3")
        A(f"s_add_u32 {s('t2')}, {s('t2')}, {s('t3')}")
        A(f"s_add_u32 {s('t2')}, {s('t2')}, {WS_ML}")
        A("s_mov_b32 exec_lo, 0x01010101")
        A("s_mov_b32 exec_hi, 0x01010101")
        A(f"buffer_store_dwordx2 {hr('ml',0,2)}, {h('d')}, {sq('WS')}, {s('t2')} offen sc1")
        A("s_mov_b64 exec, -1")

    A(f"v_lshlrev_b32 {h('t',2)}, 4, {v('lane')}")
    A(f"s_mov_b32 {s('spin')}, 0")
    A("L_h_pollall:")
    A("s_sleep 32")
    A("s_mov_b64 exec, 0xff")
    A(f"buffer_load_dword {h('e')}, {h('t',2)}, {sq('DBG')}, 0 offen offset:128 sc1")
    A("s_waitcnt vmcnt(0)")
    A(f"v_cmp_gt_u32 vcc, 32, {h('e')}")
    A("s_mov_b64 exec, -1")
    A(f"s_add_u32 {s('spin')}, {s('spin')}, 1")
    A("s_cmp_eq_u64 vcc, 0")
    A("s_cbranch_scc1 L_h_allok")
    A(f"s_cmp_lt_u32 {s('spin')}, {spin}")
    A("s_cbranch_scc1 L_h_pollall")
    A("L_h_allok:")
    A(f"v_mov_b32 {h('e')}, 1")
    A(f"ds_write_b32 {h('f')}, {h('e')} offset:8")
    wg_combine(0)
    GA, GB, GC, GO = H['t'] + 4, H['t'] + 5, H['t'] + 6, H['t'] + 7
    A(f"v_and_b32 v{GA}, 7, {v('lane')}")
    A(f"v_lshlrev_b32 v{GA}, 3, v{GA}")
    A(f"v_lshlrev_b32 v{GB}, 2, {v('g')}")
    A(f"v_add_u32 v{GC}, 16, v{GB}")
    A(f"v_lshlrev_b32 v{GO}, 3, {v('c')}")
    A(f"v_add_u32 v{GO}, {L_O}, v{GO}")
    def dpp8(op, reg, tmp):
        for mod in ("quad_perm:[1,0,3,2]", "quad_perm:[2,3,0,1]", "row_half_mirror"):
            A("s_nop 1")
            A(f"{op}_dpp {tmp}, {reg}, {reg} {mod} row_mask:0xf bank_mask:0xf")
            A(f"v_mov_b32 {reg}, {tmp}")
    SETS = [32, 48, 64]
    def poll(tag, nloads, issue, nregs, dst, sleep):
        def check(k):
            r = SETS[k]
            A(f"v_max_u32 {h('e')}, v{r}, v{r+1}")
            for i in range(2, nregs, 2):
                A(f"v_max3_u32 {h('e')}, v{r+i}, v{r+i+1}, {h('e')}")
            A(f"v_cmp_eq_u32 vcc, -1, {h('e')}")
            A("s_nop 1")
            A("s_cmp_eq_u64 vcc, 0")
            A(f"s_cbranch_scc1 {tag}_ok{k}")
        A(f"s_mov_b32 {s('spin')}, 0")
        issue(SETS[0])
        issue(SETS[1])
        A(f"{tag}_loop:")
        for k in range(3):
            if sleep: A(f"s_sleep {sleep}")
            issue(SETS[(k + 2) % 3])
            A(f"s_waitcnt vmcnt({2*nloads})")
            check(k)
        A(f"s_add_u32 {s('spin')}, {s('spin')}, 1")
        A(f"s_cmp_lt_u32 {s('spin')}, {spin}")
        A(f"s_cbranch_scc1 {tag}_loop")
        for k in range(3):
            A(f"{tag}_ok{k}:")
            for i in range(nregs):
                A(f"v_mov_b32 v{dst+i}, v{SETS[k]+i}")
            if k < 2: A(f"s_branch {tag}_done")
        A(f"{tag}_done:")
    def gather(seg, sleep):
        mlb, pob = (s('stride'), s('rstart')) if seg == 0 else (s('half'), s('rn'))
        def issue(r):
            A(f"buffer_load_dwordx4 v[{r}:{r+3}], {v('dma')}, {sq('WS')}, {pob} offen sc1")
            A(f"buffer_load_dwordx4 v[{r+4}:{r+7}], {v('dma')}, {sq('WS')}, {pob} offen offset:1024 sc1")
            A(f"buffer_load_dwordx2 v[{r+8}:{r+9}], v{GA}, {sq('WS')}, {mlb} offen sc1")
        poll(f"L_g{seg}", 3, issue, 10, H['po'], sleep)
        mm, ll = h('po', 8), h('po', 9)
        T0, T1 = h('po', 10), h('po', 11)
        A(f"v_mov_b32 {T0}, {mm}")
        dpp8("v_max_f32", T0, T1)
        A(f"v_sub_f32 {mm}, {mm}, {T0}")
        A(f"v_exp_f32 {mm}, {mm}")
        A("s_nop 0")
        A(f"v_mul_f32 {ll}, {ll}, {mm}")
        dpp8("v_add_f32", ll, T1)
        A(f"v_rcp_f32 {ll}, {ll}")
        A("s_nop 0")
        A(f"v_mul_f32 {mm}, {mm}, {ll}")
        A(f"ds_bpermute_b32 {h('po',12)}, v{GB}, {mm}")
        A(f"ds_bpermute_b32 {h('po',13)}, v{GC}, {mm}")
        A("s_waitcnt lgkmcnt(0)")
        for i in range(4):
            A(f"v_mul_f32 {h('po',i)}, {h('po',i)}, {h('po',12)}")
            A(f"v_fmac_f32 {h('po',i)}, {h('po',4+i)}, {h('po',13)}")
        for sw in ("v_permlane16_swap_b32", "v_permlane32_swap_b32"):
            for i in range(4):
                A(f"v_mov_b32 {h('po',4+i)}, {h('po',i)}")
            A("s_nop 1")
            for i in range(4):
                A(f"{sw} {h('po',i)}, {h('po',4+i)}")
            A("s_nop 1")
            for i in range(4):
                A(f"v_add_f32 {h('po',i)}, {h('po',i)}, {h('po',4+i)}")
        A(f"v_cvt_pk_bf16_f32 {h('po',14)}, {h('po',0)}, {h('po',1)}")
        A(f"v_cvt_pk_bf16_f32 {h('po',15)}, {h('po',2)}, {h('po',3)}")
        A("s_mov_b64 exec, 0xffff")
        A(f"ds_write_b64 v{GO}, {hr('po',14,2)} offset:{128*seg}")
        A("s_mov_b64 exec, -1")
    A(f"s_mov_b32 {s('spin')}, 0")
    A("L_mlw:")
    A(f"buffer_load_dwordx2 v[{SETS[0]}:{SETS[0]+1}], v{GA}, {sq('WS')}, {s('stride')} offen sc1")
    A("s_waitcnt vmcnt(0)")
    A(f"v_max_u32 {h('e')}, v{SETS[0]}, v{SETS[0]+1}")
    A(f"v_cmp_eq_u32 vcc, -1, {h('e')}")
    A(f"s_add_u32 {s('spin')}, {s('spin')}, 1")
    A("s_cmp_eq_u64 vcc, 0")
    A("s_cbranch_scc1 L_mlw_ok")
    A("s_sleep 64")
    A(f"s_cmp_lt_u32 {s('spin')}, {spin}")
    A("s_cbranch_scc1 L_mlw")
    A("L_mlw_ok:")
    gather(0, 16)
    A("s_waitcnt vmcnt(0)")
    wg_combine(1)
    if stamps: A(f"s_memrealtime {sp('st3')}")
    gather(1, tsleep)
    A("s_waitcnt lgkmcnt(0)")
    A("s_barrier")
    if stamps: A(f"s_memrealtime {sp('st4')}")
    A(f"s_and_b32 {s('t0')}, s2, 31")
    A(f"s_cmp_ge_u32 {s('t0')}, 28")
    A(f"s_cbranch_scc1 {'L_stamps' if stamps else 'L_end'}")
    A("s_waitcnt vmcnt(0)")
    def fissue(r):
        for t in range(4):
            A(f"buffer_load_dwordx4 v[{r+4*t}:{r+4*t+3}], {v('dma')}, {sq('WS')}, {s('pool')} offen offset:{t*1024} sc1")
    poll("L_fin", 4, fissue, 16, H['po'], tsleep)
    for i in range(4):
        A(f"v_add_f32 {h('po',i)}, {h('po',i)}, {h('po',4+i)}")
        A(f"v_add_f32 {h('po',8+i)}, {h('po',8+i)}, {h('po',12+i)}")
        A(f"v_add_f32 {h('po',i)}, {h('po',i)}, {h('po',8+i)}")
    for mod in ("row_ror:4", "row_ror:8"):
        A("s_nop 1")
        for i in range(4):
            A(f"v_add_f32_dpp {h('po',4+i)}, {h('po',i)}, {h('po',i)} {mod} row_mask:0xf bank_mask:0xf")
        for i in range(4):
            A(f"v_mov_b32 {h('po',i)}, {h('po',4+i)}")
    for sw in ("v_permlane16_swap_b32", "v_permlane32_swap_b32"):
        for i in range(4):
            A(f"v_mov_b32 {h('po',4+i)}, {h('po',i)}")
        A("s_nop 1")
        for i in range(4):
            A(f"{sw} {h('po',i)}, {h('po',4+i)}")
        A("s_nop 1")
        for i in range(4):
            A(f"v_add_f32 {h('po',i)}, {h('po',i)}, {h('po',4+i)}")
    A(f"v_cvt_pk_bf16_f32 {h('w',0)}, {h('po',0)}, {h('po',1)}")
    A(f"v_cvt_pk_bf16_f32 {h('w',1)}, {h('po',2)}, {h('po',3)}")
    A(f"s_lshr_b32 {s('t1')}, s2, 5")
    A(f"s_mul_i32 {s('t1')}, {s('t1')}, 896")
    A(f"s_lshl_b32 {s('t0')}, {s('t0')}, 5")
    A(f"s_add_u32 {s('t1')}, {s('t1')}, {s('t0')}")
    A(f"v_lshlrev_b32 {h('a')}, 3, {v('lane')}")
    A("s_mov_b64 exec, 15")
    A(f"buffer_store_dwordx2 {hr('w',0,2)}, {h('a')}, {sq('XO')}, {s('t1')} offen{['', ' sc1', ' sc0 sc1', ' nt'][osc]}")
    A("s_mov_b64 exec, -1")
    if stamps:
        A("L_stamps:")
        A("s_waitcnt vmcnt(0)")
        A(f"s_memrealtime {sp('st5')}")
        A("s_waitcnt lgkmcnt(0)")
        for i in range(12):
            A(f"v_mov_b32 v{32+i}, s{S['st0']+i}")
        A(f"s_mul_i32 {s('t1')}, s2, 5")
        A(f"s_add_u32 {s('t1')}, {s('t1')}, {s('wave')}")
        A(f"s_lshl_b32 {s('t1')}, {s('t1')}, 6")
        A(f"s_add_u32 {s('t1')}, {s('t1')}, {WS_DBG}")
        A("s_mov_b64 exec, 1")
        A(f"v_mov_b32 v44, {s('done')}")
        A(f"v_mov_b32 v45, 0")
        A(f"v_mov_b32 v46, 0")
        A(f"v_mov_b32 v47, 0")
        for i in range(4):
            A(f"buffer_store_dwordx4 v[{32+4*i}:{35+4*i}], {v('zero')}, {sq('WS')}, {s('t1')} offen offset:{16*i}")
    A("L_end:")
    A("s_endpgm")
    A('.section .rodata,"a"')
    A(".p2align 6")
    A(f".amdhsa_kernel {KNAME}")
    A(f"  .amdhsa_next_free_vgpr {NVGPR}")
    A("  .amdhsa_next_free_sgpr 100")
    A(f"  .amdhsa_accum_offset {NVGPR}")
    A("  .amdhsa_group_segment_fixed_size 0")
    A("  .amdhsa_kernarg_size 64")
    A("  .amdhsa_user_sgpr_count 2")
    A("  .amdhsa_user_sgpr_kernarg_segment_ptr 1")
    A("  .amdhsa_system_sgpr_workgroup_id_x 1")
    A(".end_amdhsa_kernel")
    open(name, "w").write("\n".join(out) + "\n")

if __name__ == "__main__":
    names = []
    for spec in sys.argv[1:]:
        kw = {}
        nm = "k"
        for kv in spec.split(","):
            if not kv: continue
            k, val = kv.split("=")
            kw[k] = int(val)
            nm += f"_{k}{val}"
        nm += ".s"
        gen(nm, **kw)
        names.append(nm)
    print(" ".join(names))
    print(json.dumps(["work/bench.py", "cdna_kernels/cdna_launch.py", "cdna_kernels/cdna_unwritten_srd_check.py", "standalone__gqa_block_cached__sampling_np.py"] + ["work/" + n for n in names]))
```
